```python
import torch

def _softmax(x, axis=-1):
    return torch.softmax(x, dim=axis)
def _gelu(x):
    return torch.nn.functional.gelu(x, approximate="tanh")
def _silu(x):
    return torch.nn.functional.silu(x)
def _sigmoid(x):
    return torch.sigmoid(x)
def _layernorm(x, axis=-1, eps=1e-5):
    m = x.mean(dim=axis, keepdim=True)
    v = x.var(dim=axis, keepdim=True, unbiased=False)
    return (x - m) / torch.sqrt(v + eps)
def _scatter_add(tgt, idx, src, axis=0):
    return tgt.clone().index_add_(axis, idx, src)
def _segment_sum(src, seg, n):
    out = torch.zeros((n,) + src.shape[1:], dtype=src.dtype)
    return out.index_add_(0, seg, src)
def _pad(x, pw):
    flat = tuple(v for pair in reversed(pw) for v in pair)
    return torch.nn.functional.pad(x, flat)

kernel_name = 'gated_mix__linear_attn_block__ssm_conv_s4__prompt'

def setup_inputs():

    _w = (lambda a: (lambda t: t.to(torch.bfloat16) if t.is_floating_point() else t)(torch.as_tensor(a)))
    def _A_setup():
        B, S, D = 1, 2048, 512
        return {
            "x": _w((lambda *s: torch.randn(*s, dtype=torch.bfloat16) * 0.05)(B, S, D)),
            "wqkv": _w((lambda *s: torch.randn(*s, dtype=torch.bfloat16) * 0.8)(D, 3 * D)),
            "wo": _w((lambda *s: torch.randn(*s, dtype=torch.bfloat16) * 0.05)(D, D)),
        }
    _A_in = _A_setup()

    def _B_setup():
        B, L, D, N = 1, 2048, 512, 128
        A_re = -(lambda _x: torch.exp(torch.as_tensor(_x)))((lambda *s: torch.randn(*s, dtype=torch.bfloat16) * 3.2)(D, N))
        A_im = torch.pi * (lambda *s: torch.randn(*s, dtype=torch.bfloat16) * 0.05)(D, N)
        B_re = (lambda *s: torch.randn(*s, dtype=torch.bfloat16) * 0.2)(D, N)
        B_im = (lambda *s: torch.randn(*s, dtype=torch.bfloat16) * 0.2)(D, N)
        C_re = (lambda *s: torch.randn(*s, dtype=torch.bfloat16) * 0.2)(D, N)
        C_im = (lambda *s: torch.randn(*s, dtype=torch.bfloat16) * 0.2)(D, N)
        log_dt = (lambda *s: torch.randn(*s, dtype=torch.bfloat16) * 0.05)(D) * 0.5 - 4.0
        Dskip = (lambda *s: torch.randn(*s, dtype=torch.bfloat16) * 0.05)(D)
        return {
            "u": _w((lambda *s: torch.randn(*s, dtype=torch.bfloat16) * 0.05)(B, L, D)),
            "A_re": _w(A_re),
            "A_im": _w(A_im),
            "B_re": _w(B_re),
            "B_im": _w(B_im),
            "C_re": _w(C_re),
            "C_im": _w(C_im),
            "log_dt": _w(log_dt),
            "Dskip": _w(Dskip),
        }
    _B_in = _B_setup()

    return {
        "A_x": _A_in["x"],
        "A_wqkv": _A_in["wqkv"],
        "A_wo": _A_in["wo"],
        "B_u": _B_in["u"],
        "B_A_re": _B_in["A_re"],
        "B_A_im": _B_in["A_im"],
        "B_B_re": _B_in["B_re"],
        "B_B_im": _B_in["B_im"],
        "B_C_re": _B_in["C_re"],
        "B_C_im": _B_in["C_im"],
        "B_log_dt": _B_in["log_dt"],
        "B_Dskip": _B_in["Dskip"],
        "gate_w": _w((lambda *s: torch.randn(*s, dtype=torch.bfloat16) * 0.05)(512) * 16.0),
    }

def reference(A_x, A_wqkv, A_wo, B_u, B_A_re, B_A_im, B_B_re, B_B_im, B_C_re, B_C_im, B_log_dt, B_Dskip, gate_w):
    def _A_ref(x, wqkv, wo):
        B, S, D = x.shape
        H = 32; Dh = D // H
        qkv = (lambda x, *d: x.permute(*d))((x @ wqkv).reshape(B, S, 3, H, Dh), 2, 0, 3, 1, 4)
        q, k, v = qkv[0], qkv[1], qkv[2]
        phi = lambda t: torch.where(t > 0, t + 1, torch.exp(t)) + 1e-6
        pq, pk = phi(q), phi(k)
        kv = torch.einsum("bhsd,bhse->bhde", pk, v)
        z = torch.einsum("bhsd->bhd", pk)
        num = torch.einsum("bhqd,bhde->bhqe", pq, kv)
        den = torch.einsum("bhqd,bhd->bhq", pq, z)[..., None] + 1e-6
        o = num / den
        return (lambda x, *d: x.permute(*d))(o, 0, 2, 1, 3).reshape(B, S, D) @ wo

    def _B_ref(u, A_re, A_im, B_re, B_im, C_re, C_im, log_dt, Dskip):
        Bsz, L, D = u.shape
        dt = torch.exp(log_dt)[:, None]
        A = A_re + 1j * A_im
        Bc = B_re + 1j * B_im
        Cc = C_re + 1j * C_im
        logdA = dt * A
        dB = dt * Bc
        l = (lambda x, dt: x.to(dt))(torch.arange(L), A_re.dtype)
        P = torch.exp(logdA[:, :, None] * l[None, None, :])
        K = torch.einsum("dn,dnl,dn->dl", Cc, P, dB).real
        L2 = 2 * L
        Kp = _pad(K, ((0, 0), (0, L)))
        up = (lambda x, *d: x.permute(*d))(u, 0, 2, 1)
        up = _pad(up, ((0, 0), (0, 0), (0, L)))
        Kf = (lambda x, axes=(-2,-1): torch.fft.rfft2(x.float(), dim=axes))(Kp[:, None, :], axes=(-2, -1))
        Uf = (lambda x, axes=(-2,-1): torch.fft.rfft2(x.float(), dim=axes))(up[:, :, None, :], axes=(-2, -1))
        Yf = Uf * Kf[None, :, :, :]
        y = (lambda x, s, axes=(-2,-1): torch.fft.irfft2(x, s=s, dim=axes).to(torch.bfloat16))(Yf, (1, L2), axes=(-2, -1))[:, :, 0, :L]
        y = (lambda x, *d: x.permute(*d))(y, 0, 2, 1) + u * Dskip[None, None, :]
        return y

    x = A_x
    g = _sigmoid((x * gate_w).sum(-1, keepdims=True))
    a = _A_ref(x, A_wqkv, A_wo)
    b = _B_ref(x, B_A_re, B_A_im, B_B_re, B_B_im, B_C_re, B_C_im, B_log_dt, B_Dskip)
    return g * a + (1 - g) * b
```

```python
import re

REG_RE = re.compile(r'^(-|\|)?(neg\(|abs\()?([vas])(\d+|\[(\d+):(\d+)\])\)?\|?$')
TRANS = ('v_exp_f32','v_log_f32','v_rcp_f32','v_rsq_f32','v_sqrt_f32','v_sin_f32','v_cos_f32','v_rcp_iflag_f32',
         'v_exp_f16','v_rcp_f16')

def regs_of(tok):
    tok = tok.strip()
    if tok in ('vcc',): return {('s',106),('s',107)}
    if tok == 'vcc_lo': return {('s',106)}
    if tok == 'vcc_hi': return {('s',107)}
    if tok == 'exec': return {('s',126),('s',127)}
    if tok == 'exec_lo': return {('s',126)}
    if tok == 'exec_hi': return {('s',127)}
    if tok == 'm0': return {('s',124)}
    m = REG_RE.match(tok)
    if not m: return set()
    f = m.group(3)
    if m.group(5) is not None:
        return {(f,i) for i in range(int(m.group(5)), int(m.group(6))+1)}
    return {(f,int(m.group(4)))}

def split_ops(s):
    out=[];cur='';d=0
    for ch in s:
        if ch=='[': d+=1
        if ch==']': d-=1
        if ch==',' and d==0:
            out.append(cur.strip());cur=''
        else: cur+=ch
    if cur.strip(): out.append(cur.strip())
    return out

class Ins:
    __slots__=('text','mn','ops','mods','dst','src','kind','passes','srcA','srcB','srcC','dpp','nop','label','target','cond','wide','lds_dma','ret','comment')
    def __init__(self,text):
        self.text=text
        t=text.split(';')[0].strip()
        self.label=None; self.target=None; self.cond=False
        self.dst=set(); self.src=set(); self.kind='other'; self.passes=0
        self.srcA=self.srcB=self.srcC=set(); self.dpp=False; self.nop=0; self.wide=set(); self.lds_dma=False; self.ret=False
        if not t or t.startswith('.') and not t.endswith(':'):
            self.kind='dir'; self.mn=''; self.ops=[]; self.mods=''; return
        if t.endswith(':'):
            self.kind='label'; self.label=t[:-1]; self.mn=''; self.ops=[]; self.mods=''; return
        p=t.split(None,1)
        mn=p[0]; rest=p[1] if len(p)>1 else ''
        mn=re.sub(r'_(e32|e64|dpp|sdwa)$','',mn)
        self.mn=mn
        ops=split_ops(rest)
        mods=''
        if ops:
            last=ops[-1].split(None,1)
            if len(last)>1 and not mn.startswith('s_waitcnt'):
                ops[-1]=last[0]; mods=last[1]
        self.ops=ops; self.mods=mods
        R=[regs_of(o) for o in ops]
        allr=set().union(*R) if R else set()
        if mn.startswith('v_mfma'):
            self.kind='mfma'; self.dst=R[0]; self.srcA=R[1]; self.srcB=R[2]; self.srcC=R[3]; self.src=R[1]|R[2]|R[3]
            if '32x32x16' in mn or '32x32x8' in mn: self.passes=8
            elif '16x16x32' in mn or '16x16x16' in mn: self.passes=4
            else: raise ValueError('unknown mfma '+mn)
        elif mn.startswith('v_'):
            self.kind='trans' if mn in TRANS else 'valu'
            self.dpp = ('row_' in mods or 'wave_' in mods or 'quad_perm' in mods)
            if mn.startswith('v_cmp'):
                self.dst=R[0]; self.src=set().union(*R[1:])
                if mn.startswith('v_cmpx'): self.dst|=regs_of('exec')
            elif mn.startswith('v_permlane') and 'swap' in mn:
                self.dst=R[0]|R[1]; self.src=R[0]|R[1]
            elif mn in ('v_add_co_u32','v_sub_co_u32','v_addc_co_u32','v_subb_co_u32','v_subrev_co_u32','v_mad_u64_u32','v_div_scale_f32'):
                self.dst=R[0]|R[1]; self.src=set().union(*R[2:])
            elif mn=='v_nop':
                pass
            else:
                self.dst=R[0]; self.src=set().union(*R[1:]) if len(R)>1 else set()
                if mn.startswith(('v_fmac','v_pk_fmac','v_dot2c','v_writelane','v_fma_mixlo','v_fma_mixhi')) or self.dpp:
                    self.src=self.src|R[0]
                if mn=='v_cndmask_b32' and len(ops)==3: self.src|=regs_of('vcc')
        elif mn.startswith('ds_'):
            self.kind='ds'
            if mn.startswith(('ds_read','ds_bpermute','ds_permute','ds_swizzle')) or '_rtn' in mn:
                self.dst=R[0]; self.src=set().union(*R[1:]) if len(R)>1 else set()
            else:
                self.src=allr
            if 'addtid' in mn: self.src|=regs_of('m0'); self.lds_dma=True
        elif mn.startswith(('buffer_','global_','flat_')):
            self.kind='vmem'
            islds = re.search(r'\blds\b',mods) is not None or '_lds_' in mn
            if mn.startswith(('buffer_wbl2','buffer_inv')):
                pass
            elif islds:
                self.src=allr|regs_of('m0'); self.lds_dma=True
            elif '_load' in mn:
                self.dst=R[0]; self.src=set().union(*R[1:])
            elif '_atomic' in mn:
                self.src=allr
                if re.search(r'\bsc0\b',mods):
                    if mn.startswith('buffer_'): self.dst=R[0]
                    else: self.dst=R[0]; self.src=set().union(*R[1:])
            else:
                self.src=allr
                if mn.endswith(('x4','x3')):
                    self.wide = R[0] if mn.startswith('buffer_') else R[1]
        elif mn.startswith(('s_load','s_buffer_load','s_memtime','s_memrealtime')):
            self.kind='smem'; self.dst=R[0]; self.src=set().union(*R[1:]) if len(R)>1 else set()
        elif mn=='s_waitcnt':
            self.kind='wait'
        elif mn=='s_nop':
            self.kind='nop'; self.nop=int(ops[0],0)+1
        elif mn in ('s_branch',):
            self.kind='branch'; self.target=ops[0]
        elif mn.startswith('s_cbranch'):
            self.kind='branch'; self.target=ops[0]; self.cond=True
            if 'vcc' in mn: self.src=regs_of('vcc')
        elif mn=='s_endpgm':
            self.kind='end'
        elif mn in ('s_barrier','s_setprio','s_sleep','s_sethalt'):
            self.kind='sopp'
        elif mn.startswith('s_'):
            self.kind='salu'
            if mn.startswith(('s_cmp','s_bitcmp')):
                self.src=allr
            elif 'saveexec' in mn:
                self.dst=R[0]|regs_of('exec'); self.src=R[1]|regs_of('exec')
            else:
                self.dst=R[0]; self.src=set().union(*R[1:]) if len(R)>1 else set()
                if mn.startswith(('s_addk','s_mulk','s_bitset','s_cmov')): self.src|=R[0]
        else:
            raise ValueError('unknown instruction: '+text)

def isv(r): return r[0] in 'va'

class Checker:
    MAXAGE=24
    def __init__(self, ins):
        self.ins=ins
        self.labels={x.label:i for i,x in enumerate(ins) if x.kind=='label'}
    def need(self,p,c):
        n=0
        pv={r for r in p.dst if isv(r)}
        ps={r for r in p.dst if r[0]=='s'}
        if p.kind in('valu','trans'):
            if c.kind=='mfma' and pv&c.src: n=max(n,2)
            if c.kind in('valu','trans'):
                if c.dpp and pv&c.src: n=max(n,2)
                if c.mn.startswith('v_permlane') and pv&c.src: n=max(n,2)
                if c.mn in('v_readlane_b32','v_readfirstlane_b32') and pv&c.src: n=max(n,1)
                if p.kind=='trans' and pv&c.src: n=max(n,1)
                if ps&c.src:
                    n=max(n,2)
                    if c.mn in('v_readlane_b32','v_writelane_b32'): n=max(n,4)
                if ('op_sel' in p.mods and not p.mn.startswith('v_pk_')) or 'dst_sel' in p.mods or p.mn.startswith('v_fma_mix'):
                    if pv&(c.src|c.dst): n=max(n,1)
            if c.kind=='vmem' and ps&c.src: n=max(n,5)
            if p.kind=='trans' and c.kind in('ds','vmem') and pv&c.src: n=max(n,1)
            if ('s',126) in ps:
                if c.kind=='mfma': n=max(n,4)
                if c.dpp: n=max(n,5)
                if c.mn.startswith(('v_readlane','v_readfirstlane','v_writelane','v_permlane')): n=max(n,4)
            if c.kind=='salu' and ps&c.src: n=max(n,1)
            if c.kind=='branch' and ps&c.src: n=max(n,5) if False else max(n,1)
        if p.kind=='mfma':
            big={4:8,8:12}[p.passes]
            if c.kind=='mfma':
                if p.dst&(c.srcA|c.srcB): n=max(n,big)
                if p.dst&c.srcC:
                    if not (p.dst==c.srcC and p.passes==c.passes): n=max(n,big-2)
                elif p.dst&c.dst: n=max(n,big-2)
            elif c.kind in('valu','trans','ds','vmem'):
                if p.dst&(c.src|c.dst): n=max(n,big)
                if c.kind in('valu','trans') and p.srcC&c.dst: n=max(n,{4:3,8:7}[p.passes])
        if p.kind=='salu' and ('s',124) in p.dst and c.lds_dma: n=max(n,1)
        if p.kind=='vmem' and p.wide:
            if p.wide&c.dst: n=max(n,2)
        return n
    def run(self, entry):
        ins=self.ins
        viol={}
        errs=[]
        seen=set()
        work=[(self.labels[entry],(),(),())]
        steps=0
        while work:
            pc,recent,lg,vm=work.pop()
            recent=list(recent); lg=list(lg); vm=list(vm)
            while True:
                steps+=1
                if steps>5_000_000: raise RuntimeError('checker: too many steps')
                if pc>=len(ins): errs.append('ran off end'); break
                c=ins[pc]
                if c.kind=='label':
                    key=(pc,tuple(recent),tuple(lg),tuple(vm))
                    if key in seen: break
                    seen.add(key); pc+=1; continue
                if c.kind=='dir': pc+=1; continue
                extra=0
                for (pi,age) in recent:
                    n=self.need(ins[pi],c)
                    if n>age: extra=max(extra,n-age)
                if extra:
                    viol[pc]=max(viol.get(pc,0),extra)
                    recent=[(pi,a+extra) for pi,a in recent]
                touched=c.src|c.dst
                if touched:
                    for q,nm in ((lg,'lgkm'),(vm,'vm')):
                        for pi in q:
                            p=ins[pi]
                            if p.dst&touched:
                                if c.kind==p.kind and c.kind in('ds','vmem') and not (p.dst&c.src): continue
                                errs.append(f'[{nm}] line {pc}: "{c.text.strip()}" touches pending result of line {pi}: "{p.text.strip()}"')
                if c.kind=='wait':
                    m=re.search(r'vmcnt\((\d+)\)',c.text)
                    if m:
                        n=int(m.group(1)); assert n<=63
                        if len(vm)>n: vm=vm[len(vm)-n:] if n else []
                    m=re.search(r'lgkmcnt\((\d+)\)',c.text)
                    if m:
                        n=int(m.group(1)); assert n<=15
                        if n==0: lg=[]
                        elif any(ins[i].kind=='smem' for i in lg): pass
                        elif len(lg)>n: lg=lg[len(lg)-n:]
                elif c.kind in('ds','smem'): lg.append(pc)
                elif c.kind=='vmem': vm.append(pc)
                if len(lg)>64: lg=lg[-64:]
                if len(vm)>64: vm=vm[-64:]
                inc=c.nop if c.kind=='nop' else 1
                recent=[(pi,a+inc) for pi,a in recent if a+inc<self.MAXAGE]
                if c.kind in('valu','trans','mfma') or (c.kind=='salu' and ('s',124) in c.dst) or (c.kind=='vmem' and c.wide):
                    recent.append((pc,0))
                if c.kind=='end': break
                if c.kind=='branch':
                    t=self.labels[c.target]
                    if c.cond:
                        work.append((t,tuple(recent),tuple(lg),tuple(vm)))
                    else:
                        pc=t; continue
                pc+=1
        return viol,sorted(set(errs))

class Asm:
    def __init__(self):
        self.lines=[]
    def __call__(self,text):
        for l in text.split('\n'):
            if l.strip(): self.lines.append(l.rstrip())
    def label(self,n): self.lines.append(n+':')
    def finalize(self, entries, verbose=True):
        lines=list(self.lines)
        for it in range(10):
            ins=[Ins(l) for l in lines]
            ck=Checker(ins)
            viol={}; errs=[]
            for e in entries:
                v,er=ck.run(e)
                for k,n in v.items(): viol[k]=max(viol.get(k,0),n)
                errs+=er
            if not viol: break
            out=[]
            for i,l in enumerate(lines):
                if i in viol:
                    n=viol[i]
                    if verbose: print(f'  hazard: +{n} before: {l.strip()}')
                    while n>0:
                        k=min(n,16); out.append(f'    s_nop {k-1}'); n-=k
                out.append(l)
            lines=out
        if errs:
            for e in errs[:40]: print('ERROR',e)
            raise SystemExit('waitcnt errors')
        return lines

def maxregs(lines):
    mv=ms=ma=-1
    for l in lines:
        x=Ins(l)
        for f,n in x.dst|x.src:
            if f=='v': mv=max(mv,n)
            elif f=='a': ma=max(ma,n)
            elif f=='s' and n<102: ms=max(ms,n)
    return mv,ma,ms
```

```python
import sys
from asmgen import *

OPT = dict(stamp=0)
for x in sys.argv[2:]:
    k,v = x.split('='); OPT[k]=int(v)
OUT = sys.argv[1] if len(sys.argv)>1 else '../k.s'

WS_PQ=0; WS_BT=0x200000; WS_KV=0x400000; WS_G=0x410000; WS_TS=0x420000; WS_SIZE=0x460000
LOG2E=0x3fb8aa3b; INV2PI=0x3e22f983; EPS=0x358637bd
a=Asm()
def vr(b,n): return f'v[{b}:{b+n-1}]' if n>1 else f'v{b}'
def sr(b,n): return f's[{b}:{b+n-1}]' if n>1 else f's{b}'

P_X,P_W,P_WO,P_U,P_ARE,P_AIM,P_BRE,P_BIM,P_CRE,P_CIM,P_LDT,P_DSK,P_GW,P_OUT,P_DBG,P_WS=[16+2*i for i in range(16)]
def srd(d,p,size):
    a(f'''
    s_mov_b32 s{d}, s{p}
    s_mov_b32 s{d+1}, s{p+1}
    s_mov_b32 s{d+2}, {size}
    s_mov_b32 s{d+3}, 0x20000''')
S_X,S_W,S_WS,S_DBG,S_WO,S_OUT=48,52,56,60,52,60
def stamp(idx):
    if not OPT['stamp']: return
    a(f'    s_memtime s[{80+2*idx}:{81+2*idx}]')
def stamp_flush(n,kern):
    if not OPT['stamp']: return
    a(f'''
    s_memrealtime s[78:79]
    s_waitcnt lgkmcnt(0)
    s_lshl_b32 s76, s2, 3
    s_add_u32 s76, s76, s3
    s_lshl_b32 s76, s76, 6
    s_add_u32 s76, s76, {WS_TS+kern*0x20000}''')
    for i in range(n):
        a(f'''
    v_mov_b32 v250, s{80+2*i}
    buffer_store_dword v250, off, s[{S_WS}:{S_WS+3}], s76 offset:{4*i}''')
    a(f'''
    v_mov_b32 v250, s78
    buffer_store_dword v250, off, s[{S_WS}:{S_WS+3}], s76 offset:60
    v_mov_b32 v250, s74
    buffer_store_dword v250, off, s[{S_WS}:{S_WS+3}], s76 offset:56''')

def prologue(name):
    a(f'''
{name}:
    s_cmp_ge_u32 s2, 256
    s_cbranch_scc1 L_exit_{name}''')
    if OPT['stamp']: a('    s_memrealtime s[74:75]')
    stamp(0)
    a(f'''
    s_load_dwordx16 s[16:31], s[0:1], 0
    s_load_dwordx16 s[32:47], s[0:1], 64
    v_lshrrev_b32 v1, 6, v0
    v_and_b32 v0, 63, v0
    v_readfirstlane_b32 s3, v1
    s_and_b32 s4, s2, 7
    s_lshr_b32 s6, s2, 3''')

K1='k1_kernel'
prologue(K1)
a(f'''
    s_lshr_b32 s5, s6, 1
    s_waitcnt lgkmcnt(0)''')
srd(S_X,P_X,2097152); srd(S_WS,P_WS,WS_SIZE)
a(f'''
    s_bitcmp1_b32 s6, 0
    s_cbranch_scc1 L_conv
    s_and_b32 s7, s4, 3
    s_lshl_b32 s7, s7, 2
    s_and_b32 s8, s5, 3
    s_add_u32 s7, s7, s8          ; s7 = rtile
    s_lshr_b32 s8, s4, 2
    s_lshl_b32 s8, s8, 2
    s_lshr_b32 s9, s5, 2
    s_add_u32 s8, s8, s9          ; s8 = ctile
    s_cmp_ge_u32 s3, 4
    s_cbranch_scc1 L_gload''')
srd(S_DBG,P_DBG,256)

XS=[0,16384,32768]; WSL=[49152,49152+24576,49152+2*24576]
ACC_Q=[0+8,16+8]; ACC_K=[40,56]; ACC_V=[72,88]
FR=[104,124]
VXA=[144,145,146,147]; VWA=148; VWB=149
a(f'''
    s_and_b32 s10, s3, 1           ; rh
    s_lshr_b32 s11, s3, 1          ; hp
    s_lshl_b32 s12, s8, 4
    s_cmp_lg_u32 s3, 0
    s_cbranch_scc1 L_g_noticket
    v_mov_b32 v150, 1
    s_mov_b64 exec, 1
    buffer_atomic_add v150, off, s[{S_DBG}:{S_DBG+3}], s12 sc0 sc1
    s_mov_b64 exec, -1
L_g_noticket:
    v_and_b32 v1, 31, v0           ; row32
    v_lshrrev_b32 v2, 5, v0        ; g2
    v_bfe_u32 v3, v0, 1, 3         ; f = (row>>1)&7
    v_xor_b32 v3, v3, v2           ; g2 ^ f
    s_lshl_b32 s13, s10, 13        ; rh*64*128
    v_lshl_add_u32 v4, v1, 7, s13''')
for ks in range(4):
    a(f'''
    v_xor_b32 v5, {2*ks}, v3
    v_lshl_add_u32 v{VXA[ks]}, v5, 4, v4''')
a(f'''
    v_bfe_u32 v3, v0, 2, 2         ; r
    v_lshl_add_u32 v4, v2, 3, v3   ; 8*g2 + r
    v_lshlrev_b32 v4, 7, v4
    v_and_b32 v5, 3, v0
    v_lshlrev_b32 v5, 3, v5        ; c*8
    v_bfe_u32 v6, v0, 4, 1
    v_lshl_add_u32 v5, v6, 5, v5   ; + nh*32
    v_bfe_u32 v6, v0, 3, 1         ; r>>1
    v_xor_b32 v6, s11, v6          ; hp ^ (r>>1)
    v_lshl_add_u32 v5, v6, 6, v5
    v_add_u32 v4, v4, v5
    v_add_u32 v{VWA}, {WSL[0]}, v4
    v_add_u32 v{VWB}, {WSL[2]}, v4
    v_mov_b32 v1, {EPS}''')
for r in list(range(ACC_Q[0],ACC_Q[0]+64)): a(f'    v_mov_b32 v{r}, v1')
for r in list(range(ACC_V[0],ACC_V[0]+32)): a(f'    v_mov_b32 v{r}, 0')

def g_reads(st,ks,buf):
    sl=st%3; b=FR[buf]; L=[]
    L.append(f'    ds_read_b128 {vr(b,4)}, v{VXA[ks]} offset:{XS[sl]}')
    wa,wo=(VWA,WSL[sl]-WSL[0]) if sl<2 else (VWB,0)
    def tr(part,reg):
        for half in range(2):
            L.append(f'    ds_read_b64_tr_b16 {vr(reg+2*half,2)}, v{wa} offset:{wo+part*8192+ks*2048+half*512}')
    tr(1,b+12)
    L.append(f'    ds_read_b128 {vr(b+4,4)}, v{VXA[ks]} offset:{XS[sl]+4096}')
    tr(2,b+16); tr(0,b+8)
    return L
def g_mfmas(buf):
    b=FR[buf]; M=[]
    A=[vr(b,4),vr(b+4,4)]; Bq,Bk,Bv=vr(b+8,4),vr(b+12,4),vr(b+16,4)
    for mt in range(2): M.append(f'    v_mfma_f32_32x32x16_bf16 {vr(ACC_K[mt],16)}, {A[mt]}, {Bk}, {vr(ACC_K[mt],16)}')
    for mt in range(2): M.append(f'    v_mfma_f32_32x32x16_bf16 {vr(ACC_V[mt],16)}, {A[mt]}, {Bv}, {vr(ACC_V[mt],16)}')
    for mt in range(2): M.append(f'    v_mfma_f32_32x32x16_bf16 {vr(ACC_Q[mt],16)}, {Bq}, {A[mt]}, {vr(ACC_Q[mt],16)}')
    return M
a('    s_barrier')
stamp(1)
for l in g_reads(0,0,0): a(l)
step=0
for st in range(8):
    for ks in range(4):
        buf=step&1
        M=g_mfmas(buf)
        last=(st==7 and ks==3)
        a('    s_waitcnt lgkmcnt(0)')
        if ks==3 and not last:
            a(M[0]); a('    s_barrier'); M=M[1:]
            R=g_reads(st+1,0,buf^1)
        elif last: R=[]
        else: R=g_reads(st,ks+1,buf^1)
        ri=0
        for m in M:
            a(m)
            for l in R[ri:ri+2]: a(l)
            ri+=2
        for l in R[ri:]: a(l)
        if st==1 and ks==1:
            a(f'''
    s_cmp_lg_u32 s3, 0
    s_cbranch_scc1 L_g_t1
    s_waitcnt vmcnt(0)
    v_readfirstlane_b32 s14, v150
    s_cmp_lg_u32 s14, 0
    s_cbranch_scc1 L_g_t1
    s_mul_i32 s15, s8, 4352
    s_add_u32 s15, s15, {WS_KV}
    v_lshlrev_b32 v151, 4, v0
    v_mov_b32 v152, 0
    v_mov_b32 v153, 0
    v_mov_b32 v154, 0
    v_mov_b32 v155, 0
    buffer_store_dwordx4 v[152:155], v151, s[{S_WS}:{S_WS+3}], s15 offen sc1
    buffer_store_dwordx4 v[152:155], v151, s[{S_WS}:{S_WS+3}], s15 offen offset:1024 sc1
    buffer_store_dwordx4 v[152:155], v151, s[{S_WS}:{S_WS+3}], s15 offen offset:2048 sc1
    buffer_store_dwordx4 v[152:155], v151, s[{S_WS}:{S_WS+3}], s15 offen offset:3072 sc1
    buffer_store_dwordx4 v[152:155], v151, s[{S_WS}:{S_WS+3}], s15 offen offset:3328 sc1
L_g_t1:''')
        if st==3 and ks==1:
            a(f'''
    s_cmp_lg_u32 s3, 0
    s_cbranch_scc1 L_g_t2
    s_cmp_lg_u32 s14, 0
    s_cbranch_scc1 L_g_t2
    s_waitcnt vmcnt(0)
    v_mov_b32 v150, 0x10000
    s_mov_b64 exec, 1
    buffer_atomic_add v150, off, s[{S_DBG}:{S_DBG+3}], s12 sc1
    s_mov_b64 exec, -1
L_g_t2:''')
        if st==6 and ks==1:
            a(f'    buffer_load_dword v156, off, s[{S_DBG}:{S_DBG+3}], s12 sc1')
        step+=1
stamp(2)
def phi(base,n,tmp):
    for i in range(0,n,4):
        for j in range(4): a(f'    v_mul_f32 v{tmp+j}, s70, v{base+i+j}')
        for j in range(4): a(f'    v_exp_f32_e64 v{tmp+j}, v{tmp+j} clamp')
        for j in range(4): a(f'    v_max_f32 v{base+i+j}, s71, v{base+i+j}')
        for j in range(4): a(f'    v_add_f32 v{base+i+j}, v{base+i+j}, v{tmp+j}')
def pack(dst,src,n):
    for i in range(n//2): a(f'    v_cvt_pk_bf16_f32 v{dst+i}, v{src+2*i}, v{src+2*i+1}')
a(f'''
    s_mov_b32 s70, {LOG2E}
    s_mov_b32 s71, {EPS}''')
T=104
phi(ACC_K[0],32,T)
PK=108; PV=124; D2=160
pack(PK,ACC_K[0],32); pack(PV,ACC_V[0],32)
for i in range(4):
    c='0' if i==0 else vr(D2,16)
    a(f'    v_mfma_f32_32x32x16_bf16 {vr(D2,16)}, {vr(PV+4*i,4)}, {vr(PK+4*i,4)}, {c}')
n=32
while n>1:
    n//=2
    for i in range(n): a(f'    v_add_f32 v{ACC_K[0]+i}, v{ACC_K[0]+i}, v{ACC_K[0]+n+i}')
a(f'''
    v_and_b32 v1, 3, v0
    v_bfe_u32 v2, v0, 2, 1
    v_lshl_add_u32 v1, v2, 3, v1
    v_bfe_u32 v2, v0, 3, 1
    v_lshl_add_u32 v1, v2, 2, v1       ; pos(d)
    v_and_b32 v2, 16, v0
    v_add_lshl_u32 v1, v1, v2, 2
    v_lshrrev_b32 v3, 5, v0
    v_lshl_add_u32 v3, v3, 9, v1       ; + g2*512
    v_cmp_ne_u32 vcc, 0, v2
    s_lshl_b32 s15, s8, 1
    s_add_u32 s15, s15, s11            ; pair
    s_mul_i32 s13, s15, 2176
    s_add_u32 s13, s13, {WS_KV}''')
for i in range(8): a(f'    v_cndmask_b32 v{D2+i}, v{D2+i}, v{D2+8+i}, vcc')
a(f'''
    s_mov_b32 s72, 0x40000
L_g_poll:
    s_waitcnt vmcnt(0)
    v_readfirstlane_b32 s14, v156
    s_cmp_ge_u32 s14, 0x10000
    s_cbranch_scc1 L_g_go
    buffer_load_dword v156, off, s[{S_DBG}:{S_DBG+3}], s12 sc1
    s_sub_u32 s72, s72, 1
    s_cmp_lg_u32 s72, 0
    s_cbranch_scc1 L_g_poll
L_g_go:''')
for i in range(8):
    a(f'    buffer_atomic_add_f32 v{D2+i}, v3, s[{S_WS}:{S_WS+3}], s13 offen offset:{(8*(i>>2)+(i&3))*128}')
a(f'    buffer_atomic_add_f32 v{ACC_K[0]}, v1, s[{S_WS}:{S_WS+3}], s13 offen offset:2048')
a(f'''
    s_lshl_b32 s13, s7, 1
    s_add_u32 s13, s13, s10            ; rtile*2+rh
    s_lshl_b32 s13, s13, 16
    s_lshl_b32 s15, s15, 11
    s_add_u32 s13, s13, s15
    s_add_u32 s15, s13, 32768
    v_lshlrev_b32 v2, 4, v0''')
for mt in range(2):
    phi(ACC_Q[mt],16,T)
    pack(PK+8*mt,ACC_Q[mt],16)
    so='s13' if mt==0 else 's15'
    a(f'''
    buffer_store_dwordx4 {vr(PK+8*mt,4)}, v2, s[{S_WS}:{S_WS+3}], {so} offen sc1
    buffer_store_dwordx4 {vr(PK+8*mt+4,4)}, v2, s[{S_WS}:{S_WS+3}], {so} offen offset:1024 sc1''')
stamp(3)
if OPT['stamp']:
    a('    s_waitcnt vmcnt(0)'); stamp(4); stamp_flush(5,0)
a('    s_endpgm')

a('L_gload:')
srd(S_W,P_W,1572864)
a(f'''
    s_sub_u32 s10, s3, 4           ; lw
    v_lshrrev_b32 v1, 3, v0
    v_lshrrev_b32 v2, 4, v0
    s_and_b32 s11, s10, 1
    s_lshl_b32 s11, s11, 2
    v_add_u32 v3, s11, v2          ; f
    v_and_b32 v4, 7, v0
    v_xor_b32 v3, v3, v4
    s_lshl_b32 s12, s7, 7
    s_lshl_b32 s13, s10, 3
    s_add_u32 s12, s12, s13
    v_add_u32 v5, s12, v1
    v_lshlrev_b32 v5, 10, v5
    v_lshl_add_u32 v10, v3, 4, v5  ; v10 = x voffset
    v_and_b32 v2, 1, v2
    v_lshlrev_b32 v2, 2, v2
    v_xor_b32 v2, v2, v4
    v_add_u32 v5, s13, v1
    v_mul_u32_u24 v5, 3072, v5
    s_lshl_b32 s12, s8, 7
    v_add_u32 v5, s12, v5
    v_lshl_add_u32 v11, v2, 4, v5  ; v11 = w voffset
    s_lshl_b32 s14, s10, 10        ; lw*1024''')
def g_issue(st):
    sl=st%3; kc=st
    for q in range(4):
        a(f'''
    s_add_u32 m0, s14, {XS[sl]+q*4096}
    s_mov_b32 s15, {kc*128+q*32768}
    buffer_load_dwordx4 v10, s[{S_X}:{S_X+3}], s15 offen lds''')
    for ih in range(2):
        for p in (1,2,0):
            a(f'''
    s_add_u32 m0, s14, {WSL[sl]+p*8192+ih*4096}
    s_mov_b32 s15, {kc*64*3072+ih*32*3072+p*1024}
    buffer_load_dwordx4 v11, s[{S_W}:{S_W+3}], s15 offen lds''')
g_issue(0); g_issue(1)
for k in range(8):
    a(f'    s_waitcnt vmcnt({10 if k<7 else 0})')
    if k<5: stamp(1+k)
    a('    s_barrier')
    if k+2<8: g_issue(k+2)
stamp(6)
stamp_flush(7,0)
a('    s_endpgm')

TABSZ=59*528; U0=4*TABSZ; USZ=9152; UCP=4576; KBOFF=4224
a(f'''
L_conv:
    s_lshl_b32 s7, s4, 4
    s_add_u32 s7, s7, s5
    s_cmp_ge_u32 s3, 4
    s_cbranch_scc1 L_cload
    s_lshl_b32 s8, s7, 2
    s_add_u32 s8, s8, s3
    s_lshl_b32 s9, s8, 8
    v_lshl_add_u32 v1, v0, 2, s9
    s_lshl_b32 s9, s8, 1
    v_mov_b32 v2, s9
    global_load_ushort v10, v2, s[{P_LDT}:{P_LDT+1}]
    global_load_dword v4, v1, s[{P_ARE}:{P_ARE+1}]
    global_load_dword v5, v1, s[{P_AIM}:{P_AIM+1}]
    global_load_dword v6, v1, s[{P_BRE}:{P_BRE+1}]
    global_load_dword v7, v1, s[{P_BIM}:{P_BIM+1}]
    global_load_dword v8, v1, s[{P_CRE}:{P_CRE+1}]
    global_load_dword v9, v1, s[{P_CIM}:{P_CIM+1}]
    global_load_ushort v11, v2, s[{P_DSK}:{P_DSK+1}]
    s_mul_i32 s10, s3, {TABSZ}
    s_mov_b32 s70, {LOG2E}
    s_mov_b32 s71, {INV2PI}
    s_mov_b32 s72, 0x43800000      ; 256.0''')
VTW=100; VFA=101; VGA=102; VA01=103; VA2=104; VA3=105; VZP=106; VCA=107; VCB=108; VST=109
a(f'''
    v_lshl_add_u32 v{VTW}, v0, 3, s10
    v_and_b32 v12, 31, v0                       ; m / b
    v_lshrrev_b32 v13, 5, v0                    ; g
    v_lshlrev_b32 v14, v12, 2
    v_add_u32 v14, -1, v14                      ; (2<<m)-1
    v_and_b32 v14, {(1<<11)|(1<<12)|(1<<15)|(1<<19)|(1<<23)}, v14
    v_bcnt_u32_b32 v14, v14, 0
    v_sub_u32 v14, v12, v14                     ; T(m)
    v_mul_u32_u24 v14, 528, v14
    v_lshl_add_u32 v15, v13, 4, s10             ; base + 16g
    v_add_u32 v{VFA}, v14, v15
    v_mul_u32_u24 v14, 528, v12
    v_add_u32 v14, {27*528}, v14
    v_add_u32 v{VGA}, v14, v15
    v_lshl_add_u32 v14, v12, 4, s10             ; base + 16b
    v_lshl_add_u32 v{VA01}, v13, 3, v14
    v_lshl_add_u32 v{VA2}, v13, 9, v14
    v_lshl_add_u32 v{VA3}, v13, 10, v14
    v_and_b32 v14, 15, v0
    v_sub_u32 v15, 15, v13
    v_min_u32 v14, v14, v15
    v_mul_u32_u24 v15, {KBOFF}, v13
    v_lshl_add_u32 v14, v14, 2, s10
    v_add_u32 v{VZP}, v14, v15
    v_and_b32 v14, 15, v0
    v_lshrrev_b32 v15, 4, v0                    ; h
    v_lshlrev_b32 v16, 2, v14
    v_lshl_add_u32 v16, v15, 4, v16
    v_and_b32 v17, 1, v0
    v_mul_u32_u24 v18, {KBOFF-4}, v17
    v_sub_u32 v16, v16, v18
    v_add_u32 v16, {KBOFF}, v16
    v_add_u32 v{VCA}, s10, v16
    s_mul_i32 s11, s3, {USZ}
    s_add_u32 s11, s11, {U0+448}
    v_mul_u32_u24 v18, {UCP}, v17
    v_lshl_add_u32 v18, v15, 4, v18
    v_lshrrev_b32 v16, 1, v14                   ; i'
    v_lshlrev_b32 v19, 6, v16
    v_sub_u32 v18, v18, v19
    v_add_u32 v{VCB}, s11, v18
    v_lshl_add_u32 v18, v15, 1, v17
    v_lshlrev_b32 v18, 4, v18
    v_lshl_add_u32 v{VST}, v16, 7, v18
    v_cmp_eq_u32 s[12:13], 1, v17
    v_cmp_eq_u32 s[14:15], 0, v0                ; lane 0''')
def cmul(d,x,y,conj_y=False):
    n1=' neg_lo:[1,0,0] neg_hi:[1,0,0]'
    a(f'    v_pk_mul_f32 {vr(d,2)}, {vr(x,2)}, {vr(y,2)}')
    a(f'    v_pk_mul_f32 {vr(d+2,2)}, {vr(x+2,2)}, {vr(y,2)}')
    a(f'    v_pk_fma_f32 {vr(d,2)}, {vr(x+2,2)}, {vr(y+2,2)}, {vr(d,2)}'+('' if conj_y else n1))
    a(f'    v_pk_fma_f32 {vr(d+2,2)}, {vr(x,2)}, {vr(y+2,2)}, {vr(d+2,2)}'+(n1 if conj_y else ''))
wtmp=[96,98]; wi=[0]
def trow(row,x):
    t=wtmp[wi[0]&1]; wi[0]+=1
    a(f'    v_cvt_pk_f16_f32 v{t}, v{x}, v{x+1}')
    a(f'    v_cvt_pk_f16_f32 v{t+1}, v{x+2}, v{x+3}')
    a(f'    ds_write_b64 v{VTW}, {vr(t,2)} offset:{row*528}')
AR=20; TH=22; BB=24; CC=28; CB=32; E1=36; E2=40; E4=44; E8=48; PP=52; X0=56; X1=60; X2=64; TM=68
def unpack(d,s):
    a(f'    v_lshlrev_b32 v{d}, 16, v{s}')
    a(f'    v_and_b32 v{d+1}, 0xffff0000, v{s}')
def cexp(d,scale):
    for i in range(2):
        if scale:
            a(f'    v_mul_f32 v{TM+i}, {scale}, v{AR+i}')
            a(f'    v_mul_f32 v{TM+2+i}, {scale}, v{TH+i}')
    m=[TM,TM+1] if scale else [AR,AR+1]
    t=[TM+2,TM+3] if scale else [TH,TH+1]
    for i in range(2): a(f'    v_rndne_f32 v{TM+4+i}, v{t[i]}')
    for i in range(2): a(f'    v_exp_f32 v{TM+6+i}, v{m[i]}')
    for i in range(2): a(f'    v_sub_f32 v{TM+4+i}, v{t[i]}, v{TM+4+i}')
    for i in range(2): a(f'    v_cos_f32 v{d+i}, v{TM+4+i}')
    for i in range(2): a(f'    v_sin_f32 v{d+2+i}, v{TM+4+i}')
    a(f'    v_pk_mul_f32 {vr(d,2)}, {vr(d,2)}, {vr(TM+6,2)}')
    a(f'    v_pk_mul_f32 {vr(d+2,2)}, {vr(d+2,2)}, {vr(TM+6,2)}')
a(f'''
    v_mov_b32 v96, 0x3c003c00
    v_mov_b32 v97, 0
    ds_write_b64 v{VTW}, v[96:97]
    s_waitcnt vmcnt(5)''')
wi[0]=1
stamp(1)
a(f'''
    v_lshlrev_b32 v10, 16, v10
    v_mul_f32 v10, s70, v10
    v_exp_f32 v10, v10''')
unpack(AR,4); unpack(TH,5)
a(f'''
    v_cvt_pk_bf16_f32 v10, v10, v10
    v_and_b32 v12, 0xffff0000, v10
    v_mul_f32 v{AR}, v12, v{AR}
    v_mul_f32 v{AR+1}, v12, v{AR+1}
    v_mul_f32 v{TH}, v12, v{TH}
    v_mul_f32 v{TH+1}, v12, v{TH+1}
    v_mul_f32 v{AR}, s70, v{AR}
    v_mul_f32 v{AR+1}, s70, v{AR+1}
    v_mul_f32 v{TH}, s71, v{TH}
    v_mul_f32 v{TH+1}, s71, v{TH+1}''')
cexp(E1,None); cexp(PP,'s72')
a('    s_waitcnt vmcnt(0)')
unpack(BB,6); unpack(BB+2,7); unpack(CC,8); unpack(CC+2,9)
cmul(CB,BB,CC)
a(f'''
    v_max3_f32 v13, |v{CB}|, |v{CB+1}|, |v{CB+2}|
    v_max_f32 v13, |v{CB+3}|, v13''')
trow(1,E1)
a(f'    v_max_f32_dpp v13, v13, v13 row_shr:1 row_mask:0xf bank_mask:0xf')
cmul(E2,E1,E1);
a(f'    v_max_f32_dpp v13, v13, v13 row_shr:2 row_mask:0xf bank_mask:0xf')
trow(2,E2)
a(f'    v_max_f32_dpp v13, v13, v13 row_shr:4 row_mask:0xf bank_mask:0xf')
cmul(X0,E2,E1)
a(f'    v_max_f32_dpp v13, v13, v13 row_shr:8 row_mask:0xf bank_mask:0xf')
trow(3,X0)
a(f'    v_max_f32_dpp v13, v13, v13 row_bcast:15 row_mask:0xa bank_mask:0xf')
cmul(E4,E2,E2)
a(f'    v_max_f32_dpp v13, v13, v13 row_bcast:31 row_mask:0xc bank_mask:0xf')
trow(4,E4)
a(f'    v_readlane_b32 s66, v13, 63')
cmul(X0,E4,E1); trow(5,X0)
a(f'''
    s_lshr_b32 s66, s66, 23
    s_max_u32 s66, s66, 1
    s_min_u32 s66, s66, 253
    s_lshl_b32 s67, s66, 23
    s_sub_u32 s66, 254, s66
    s_lshl_b32 s66, s66, 23        ; scale''')
cmul(X1,E4,E2); trow(6,X1)
cmul(X0,X1,E1); trow(7,X0)
cmul(E8,E4,E4)
trow(8,PP)
cmul(X0,PP,E2); trow(9,X0)
cmul(X1,X0,E2); trow(10,X1)
cmul(X0,X1,E2); trow(11,X0)
cmul(X1,X0,E2); trow(12,X1)
cmul(X2,PP,PP); trow(13,X2)
cmul(X0,X2,E4); trow(14,X0)
cmul(X1,X0,E4); trow(15,X1)
cmul(X0,X2,PP); trow(16,X0)
cmul(X1,X0,E4); trow(17,X1)
cmul(X2,X1,E4); trow(18,X2)
cur,oth=X0,X2
for i in range(4):
    cmul(oth,cur,PP); trow(19+2*i,oth)
    cmul(X1,oth,E8); trow(20+2*i,X1)
    cur,oth=oth,cur
a(f'''
    v_mul_f32 v{X0}, s66, v{CB}
    v_mul_f32 v{X0+1}, s66, v{CB+1}
    v_mul_f32 v{X0+2}, s66, -v{CB+2}
    v_mul_f32 v{X0+3}, s66, -v{CB+3}
    v_mul_f32 v12, s67, v12
    v_lshlrev_b32 v11, 16, v11
    v_cndmask_b32 v11, 0, v11, s[14:15]''')
trow(27,X0)
cur,oth=X0,X1
for b in range(1,32):
    cmul(oth,cur,E8,conj_y=True); trow(27+b,oth)
    cur,oth=oth,cur
stamp(2)
KD=20
FA=110
a('    s_waitcnt lgkmcnt(0)')
for ks in range(16):
    a(f'    ds_read_b128 {vr(FA+8*ks,4)}, v{VFA} offset:{32*ks}')
    a(f'    ds_read_b128 {vr(FA+8*ks+4,4)}, v{VGA} offset:{32*ks}')
    if ks>=3:
        k=ks-3
        a('    s_waitcnt lgkmcnt(6)')
        a(f'    v_mfma_f32_32x32x16_f16 {vr(KD,16)}, {vr(FA+8*k,4)}, {vr(FA+8*k+4,4)}, '+('0' if k==0 else vr(KD,16)))
for k in range(13,16):
    a(f'    s_waitcnt lgkmcnt({2*(15-k)})')
    a(f'    v_mfma_f32_32x32x16_f16 {vr(KD,16)}, {vr(FA+8*k,4)}, {vr(FA+8*k+4,4)}, {vr(KD,16)}')
a(f'''
    v_mov_b32 v13, 0
    ds_write_b32 v{VZP}, v13''')
stamp(3)
a(f'    v_fma_f32 v{KD}, v{KD}, v12, v11')
for i in range(1,16):
    if i in (7,11): continue
    a(f'    v_mul_f32 v{KD+i}, v12, v{KD+i}')
d=lambda i: f'v{KD+i}'
W=40
def wr2(addr,regs,offA):
    n=len(regs)
    if n==2: a(f'    ds_write_b64 v{addr}, {vr(regs[0],2)} offset:{64+offA}')
    else: a(f'    ds_write_b128 v{addr}, {vr(regs[0],4)} offset:{64+offA}')
    for i in range(n): a(f'    ds_write_b32 v{addr}, v{regs[i]} offset:{KBOFF+60+offA+4*i}')
a(f'''
    v_cvt_pk_bf16_f32 v{W}, {d(0)}, {d(1)}
    v_cvt_pk_bf16_f32 v{W+1}, {d(2)}, {d(3)}''')
wr2(VA01,[W,W+1],0)
a(f'''
    v_cvt_pk_bf16_f32 v{W+2}, {d(4)}, {d(4)}
    v_cvt_pk_bf16_f32 v{W+3}, {d(5)}, {d(6)}''')
wr2(VA01,[W+2,W+3],512)
a(f'''
    v_cvt_pk_bf16_f32 v{W+4}, {d(8)}, {d(8)}
    v_cvt_pk_bf16_f32 v{W+5}, {d(8)}, {d(9)}
    v_cvt_pk_bf16_f32 v{W+6}, {d(9)}, {d(9)}
    v_cvt_pk_bf16_f32 v{W+7}, {d(10)}, {d(10)}''')
wr2(VA2,[W+4,W+5,W+6,W+7],1024)
for w in range(2):
    A_,B_=d(12+2*w),d(13+2*w); R=W+8+4*w
    a(f'''
    v_cndmask_b32 v13, {A_}, {B_}, s[12:13]
    v_cvt_pk_bf16_f32 v{R}, {A_}, {A_}
    v_cvt_pk_bf16_f32 v{R+1}, {A_}, {A_}
    v_cvt_pk_bf16_f32 v{R+2}, v13, {B_}
    v_cvt_pk_bf16_f32 v{R+3}, {B_}, {B_}''')
    wr2(VA3,[R,R+1,R+2,R+3],2048+512*w)
ACC=60
CF=[110,158]
for r in range(ACC,ACC+32): a(f'    v_mov_b32 v{r}, 0')
a('''
    s_waitcnt lgkmcnt(0)
    s_barrier''')
stamp(4)
def c_reads(buf,sp,nsig,js):
    b=CF[buf]; L=[]
    for idx,j in enumerate(js):
        L.append(f'    ds_read_b128 {vr(b+32+4*idx,4)}, v{VCB} offset:{512*(7-j)+64*sp}')
    LA=[]
    for sg in range(nsig):
        LA.append(f'    ds_read_b64 {vr(b+4*sg,2)}, v{VCA} offset:{512*sg+64*sp}')
        LA.append(f'    ds_read_b64 {vr(b+4*sg+2,2)}, v{VCA} offset:{512*sg+64*sp+8}')
    return L[:1]+LA[:2]+L[1:]+LA[2:]
def c_mfmas(buf,nsig,js):
    b=CF[buf]; M=[]
    for sg in range(nsig):
        for idx,j in enumerate(js):
            nt=j+sg
            if nt<=7: M.append(f'    v_mfma_f32_16x16x32_bf16 {vr(ACC+4*nt,4)}, {vr(b+4*sg,4)}, {vr(b+32+4*idx,4)}, {vr(ACC+4*nt,4)}')
    return M
def c_store(p,tmp):
    L=[]
    for t in range(2):
        nt=2*p+t
        L.append(f'    v_cvt_pk_bf16_f32 v{tmp+2*t}, v{ACC+4*nt}, v{ACC+4*nt+1}')
        L.append(f'    v_cvt_pk_bf16_f32 v{tmp+2*t+1}, v{ACC+4*nt+2}, v{ACC+4*nt+3}')
    L.append(f'    buffer_store_dwordx4 {vr(tmp,4)}, v{VST}, s[{S_WS}:{S_WS+3}], s9 offen offset:{1024*p} sc1')
    return L
a(f'''
    s_lshl_b32 s9, s8, 12
    s_add_u32 s9, s9, {WS_BT}''')
seq=[(sp,8,[0,1,2,3]) for sp in range(8)]+[(sp,4,[4,5,6,7]) for sp in range(8)]
for l in c_reads(0,*seq[0]): a(l)
for it,(sp,nsig,js) in enumerate(seq):
    buf=it&1
    M=c_mfmas(buf,nsig,js)
    a('    s_waitcnt lgkmcnt(0)')
    R=[]
    if it==7:
        a(M[0]); M=M[1:]
        a('    s_barrier')
        stamp(5)
    if it+1<len(seq): R=c_reads(buf^1,*seq[it+1])
    if it==9: R=R+c_store(0,40)
    if it==10: R=R+c_store(1,44)
    per=1 if len(R)<=len(M)-4 else 2
    ri=0
    for m in M:
        a(m)
        for l in R[ri:ri+per]: a(l)
        ri+=per
    for l in R[ri:]: a(l)
for l in c_store(2,48)+c_store(3,52): a(l)
stamp(6)
if OPT['stamp']:
    a('    s_waitcnt vmcnt(0)'); stamp(7); stamp_flush(8,0)
a('    s_endpgm')

a(f'''
L_cload:
    s_sub_u32 s10, s3, 4           ; lw
    s_lshl_b32 s11, s10, 18
    s_lshl_b32 s12, s7, 3
    s_add_u32 s11, s11, s12
    v_lshl_add_u32 v1, v0, 12, s11
    s_sub_u32 s13, s11, 1024
    v_mov_b32 v2, s13
    s_add_u32 s13, s13, 0x100000
    v_mov_b32 v3, s13
    s_mov_b32 s14, 0x100000''')
RA=[10,20]
for rd in range(2):
    so='0' if rd==0 else 's14'
    a(f'    buffer_load_dwordx2 {vr(RA[rd],2)}, v{2+rd}, s[{S_X}:{S_X+3}], 0 offen')
    for i in range(4):
        a(f'    buffer_load_dwordx2 {vr(RA[rd]+2+2*i,2)}, v1, s[{S_X}:{S_X+3}], {so} offen offset:{1024*i}')
a(f'''
    s_lshl_b32 s15, s7, 2
    s_add_u32 s15, s15, s10
    s_lshl_b32 s66, s15, 12
    v_lshlrev_b32 v4, 4, v0
    global_load_dwordx4 v[32:35], v4, s[{P_GW}:{P_GW+1}]''')
for i in range(4):
    a(f'    buffer_load_dwordx4 {vr(36+4*i,4)}, v4, s[{S_X}:{S_X+3}], s66 offen offset:{1024*i}')
a(f'''
    v_and_b32 v5, 31, v0
    v_min_u32 v5, 27, v5
    v_lshrrev_b32 v6, 5, v0
    v_mul_u32_u24 v6, {UCP}, v6
    v_lshl_add_u32 v5, v5, 4, v6
    s_mul_i32 s67, s10, {USZ}
    s_add_u32 s67, s67, {U0+4096}
    v_add_u32 v5, s67, v5
    v_mov_b32 v52, 0
    v_mov_b32 v53, 0
    v_mov_b32 v54, 0
    v_mov_b32 v55, 0
    ds_write_b128 v5, v[52:55]
    s_lshl_b32 s67, s10, 9
    s_sub_u32 s67, {U0+4088-2048}, s67
    v_lshlrev_b32 v6, 3, v0
    v_sub_u32 v6, s67, v6
    s_mov_b32 s64, 0x05040100
    s_mov_b32 s65, 0x07060302''')
for rd in range(2):
    b=RA[rd]
    a(f'    s_waitcnt vmcnt({10 if rd==0 else 5})')
    stamp(1+2*rd)
    a(f'''
    v_mov_b32_dpp v{b}, v{b+8} wave_shr:1 row_mask:0xf bank_mask:0xf
    v_mov_b32_dpp v{b+1}, v{b+9} wave_shr:1 row_mask:0xf bank_mask:0xf''')
    row=lambda i,c: b+2+2*i+(c>>1)
    t=56
    for c in range(4):
        sel='s64' if c%2==0 else 's65'
        off=c*USZ+(2048 if rd==0 else 0)
        a(f'''
    v_perm_b32 v{t}, v{row(2,c)}, v{row(3,c)}, {sel}
    v_perm_b32 v{t+1}, v{row(0,c)}, v{row(1,c)}, {sel}
    v_perm_b32 v{t+2}, v{row(1,c)}, v{row(2,c)}, {sel}
    v_perm_b32 v{t+3}, v{row(-1,c)}, v{row(0,c)}, {sel}
    ds_write_b64 v6, {vr(t,2)} offset:{off+UCP}
    ds_write_b64 v6, {vr(t+2,2)} offset:{off}''')
        t+=4
    a('''
    s_waitcnt lgkmcnt(0)''')
    stamp(2+2*rd)
    a('    s_barrier')
a('    s_waitcnt vmcnt(0)')
for i in range(4): a(f'    v_mov_b32 v{56+i}, 0')
for k in range(4):
    for i in range(4): a(f'    v_dot2c_f32_bf16 v{56+i}, v{36+4*i+k}, v{32+k}')
a('    s_nop 2')
for m in ['row_shr:1 row_mask:0xf','row_shr:2 row_mask:0xf','row_shr:4 row_mask:0xf','row_shr:8 row_mask:0xf','row_bcast:15 row_mask:0xa','row_bcast:31 row_mask:0xc']:
    for i in range(4): a(f'    v_add_f32_dpp v{56+i}, v{56+i}, v{56+i} {m} bank_mask:0xf')
a(f'    s_mov_b32 s70, {LOG2E|0x80000000}')
for i in range(4): a(f'    v_mul_f32 v{56+i}, s70, v{56+i}')
for i in range(4): a(f'    v_exp_f32 v{56+i}, v{56+i}')
for i in range(4): a(f'    v_add_f32 v{56+i}, 1.0, v{56+i}')
for i in range(4): a(f'    v_rcp_f32 v{56+i}, v{56+i}')
a(f'''
    s_lshl_b32 s15, s15, 4
    s_add_u32 s15, s15, {WS_G}
    s_mov_b32 exec_lo, 0
    s_mov_b32 exec_hi, 0x80000000
    buffer_store_dwordx4 v[56:59], off, s[{S_WS}:{S_WS+3}], s15 sc1
    s_mov_b64 exec, -1''')
stamp(5)
stamp_flush(6,0)
a(f'''
L_exit_{K1}:
    s_endpgm''')

K2='k2_kernel'
a('.p2align 8')
prologue(K2)
L_WO=0; L_PQ=65536; L_KV=131072; KVROW=80; KVPAIR=17*80; L_BT=L_KV+16*KVPAIR
a(f'''
    s_and_b32 s7, s6, 3
    s_lshl_b32 s8, s4, 2
    s_add_u32 s7, s7, s8           ; s7 = RT (0..31)
    s_lshr_b32 s8, s6, 2           ; s8 = J
    s_lshr_b32 s9, s7, 3
    s_lshl_b32 s9, s9, 4
    s_and_b32 s10, s7, 7
    s_add_u32 s9, s9, s10
    s_waitcnt lgkmcnt(0)''')
srd(S_WS,P_WS,WS_SIZE)
a(f'''
    s_cmp_ge_u32 s3, 4
    s_cbranch_scc1 L_k2load''')
srd(S_OUT,P_OUT,2097152)
a(f'''
    s_and_b32 s10, s3, 1           ; rh
    s_lshr_b32 s11, s3, 1          ; kh
    s_lshl_b32 s12, s3, 6
    v_add_u32 v1, s12, v0          ; tid
    v_lshlrev_b32 v2, 5, v1
    s_mov_b32 s13, {WS_KV}''')
KVR=100
for r in range(4):
    a(f'''
    buffer_load_dwordx4 {vr(KVR+8*r,4)}, v2, s[{S_WS}:{S_WS+3}], s13 offen
    buffer_load_dwordx4 {vr(KVR+8*r+4,4)}, v2, s[{S_WS}:{S_WS+3}], s13 offen offset:16
    s_add_u32 s13, s13, 8192''')
a(f'''
    v_lshlrev_b32 v3, 5, v0
    buffer_load_dwordx4 {vr(KVR+32,4)}, v3, s[{S_WS}:{S_WS+3}], s13 offen
    buffer_load_dwordx4 {vr(KVR+36,4)}, v3, s[{S_WS}:{S_WS+3}], s13 offen offset:16
    v_and_b32 v4, 3, v0
    v_lshlrev_b32 v4, 1, v4
    v_bfe_u32 v5, v0, 2, 1
    v_add_u32 v4, v4, v5
    v_and_b32 v5, 24, v0
    v_add_u32 v4, v4, v5           ; v4 = row32
    s_lshl_b32 s14, s10, 3
    s_add_u32 s14, s14, s9         ; rowtile32
    s_lshl_b32 s15, s14, 7
    s_add_u32 s15, s15, {WS_G}
    v_lshlrev_b32 v5, 2, v4
    buffer_load_dword v8, v5, s[{S_WS}:{S_WS+3}], s15 offen
    v_lshrrev_b32 v6, 5, v0        ; g2''')
VPQ=10; VKV=11; VWO=12; VBT=13; VOUT=14; VRED=15; VRD2=16
a(f'''
    v_lshl_add_u32 v7, v6, 5, v4
    s_lshl_b32 s66, s10, 15
    s_lshl_b32 s67, s11, 11
    s_add_u32 s66, s66, s67
    s_add_u32 s66, s66, {L_PQ}
    v_lshl_add_u32 v{VPQ}, v7, 4, s66
    v_lshl_add_u32 v{VRED}, v0, 4, s66
    s_xor_b32 s66, s66, 2048
    v_lshl_add_u32 v{VRD2}, v0, 4, s66
    v_and_b32 v7, 31, v0
    v_min_u32 v7, 16, v7
    v_mul_u32_u24 v7, {KVROW}, v7
    v_lshl_add_u32 v7, v6, 4, v7
    s_mul_i32 s66, s11, {KVPAIR}
    s_add_u32 s66, s66, {L_KV}
    v_add_u32 v{VKV}, s66, v7
    v_bfe_u32 v7, v0, 2, 2
    v_lshl_add_u32 v9, v6, 2, v7
    v_lshlrev_b32 v9, 7, v9        ; (4*g2+r)*128
    v_and_b32 v17, 3, v0
    v_bfe_u32 v18, v0, 4, 1
    v_lshlrev_b32 v19, 3, v17
    v_lshl_add_u32 v19, v18, 5, v19
    v_bfe_u32 v20, v0, 3, 1
    v_lshl_add_u32 v19, v20, 6, v19
    s_lshl_b32 s66, s11, 12
    v_add3_u32 v{VWO}, v9, v19, s66
    v_xor_b32 v21, 64, v{VWO}
    v_lshlrev_b32 v19, 4, v17
    v_lshl_add_u32 v19, v18, 6, v19
    s_lshl_b32 s67, s10, 3
    s_add_u32 s66, s66, s67
    s_add_u32 s66, s66, {L_BT}
    v_add3_u32 v{VBT}, v9, v19, s66
    v_lshlrev_b32 v9, 10, v4
    v_lshl_add_u32 v{VOUT}, v6, 4, v9
    s_lshl_b32 s64, s14, 15
    s_lshl_b32 s66, s8, 7
    s_add_u32 s64, s64, s66
    s_lshl_b32 s66, s11, 6
    s_add_u32 s64, s64, s66
    v_lshrrev_b32 v9, 2, v1
    v_mul_u32_u24 v9, {KVROW}, v9
    v_lshl_add_u32 v9, v17, 4, v9
    v_add_u32 v9, {L_KV}, v9
    v_lshrrev_b32 v22, 2, v0
    v_mul_u32_u24 v22, {KVROW}, v22
    v_lshl_add_u32 v22, v17, 4, v22
    v_add_u32 v22, {L_KV+256*KVROW}, v22
    s_mov_b32 s71, {EPS}''')
VWO2=21
for r in range(5):
    a(f'    s_waitcnt vmcnt({9-2*r})')
    for i in range(4): a(f'    v_cvt_pk_bf16_f32 v{24+4*r+i}, v{KVR+8*r+2*i}, v{KVR+8*r+2*i+1}')
    if r<4: a(f'    ds_write_b128 v9, {vr(24+4*r,4)} offset:{64*KVROW*r}')
    else: a(f'    ds_write_b128 v22, {vr(24+4*r,4)}')
a('    s_waitcnt vmcnt(0) lgkmcnt(0)')
stamp(1)
ACC2=[48,64]
D1=[80,96]
F2=[112,144]
OF=176
own=lambda ct: None
def k2_reads(c,buf):
    b=F2[buf]; L=[]
    for h in range(2):
        L.append(f'    ds_read_b128 {vr(b+4*h,4)}, v{VPQ} offset:{4096*c+1024*h}')
        L.append(f'    ds_read_b128 {vr(b+8+4*h,4)}, v{VKV} offset:{2*KVPAIR*c+32*h}')
    for h in range(2):
        for ct in range(2):
            for hf in range(2):
                L.append(f'    ds_read_b64_tr_b16 {vr(b+16+8*h+4*ct+2*hf,2)}, v{VWO if ct==0 else VWO2} offset:{8192*c+2048*h+1024*hf}')
    return L
a(f'''
    s_lshl_b32 s66, s11, 6
    v_xor_b32 v{VWO}, s66, v{VWO}
    v_xor_b32 v{VWO2}, s66, v{VWO2}
    v_sub_f32 v23, 1.0, v8''')
def k2_stage2(buf,first):
    b=F2[buf]
    for h in range(2):
        d=D1[h]
        a(f'''
    v_add_f32 v{d+8}, s71, v{d+8}
    v_rcp_f32 v{d+8}, v{d+8}
    v_mul_f32 v{d+8}, v8, v{d+8}''')
        for i in range(8): a(f'    v_mul_f32 v{d+i}, v{d+8}, v{d+i}')
        for i in range(4): a(f'    v_cvt_pk_bf16_f32 v{OF+4*h+i}, v{d+2*i}, v{d+2*i+1}')
        for ct in range(2):
            c=vr(ACC2[ct],16)
            if first and h==0 and ct==1: c='0'
            a(f'    v_mfma_f32_32x32x16_bf16 {vr(ACC2[ct],16)}, {vr(b+16+8*h+4*ct,4)}, {vr(OF+4*h,4)}, {c}')
for c in range(8):
    buf=c&1
    a('    s_barrier')
    if c==0:
        stamp(2)
        for q in range(4): a(f'    ds_read_b64_tr_b16 {vr(24+2*q,2)}, v{VBT} offset:{1024*q}')
    for l in k2_reads(c,buf): a(l)
    if c==0:
        a('    s_waitcnt lgkmcnt(%d)'%(0 if OPT['stamp'] else 12))
        for i in range(8):
            a(f'    v_lshlrev_b32 v{ACC2[0]+2*i}, 16, v{24+i}')
            a(f'    v_and_b32 v{ACC2[0]+2*i+1}, 0xffff0000, v{24+i}')
        for i in range(16): a(f'    v_mul_f32 v{ACC2[0]+i}, v23, v{ACC2[0]+i}')
    else:
        k2_stage2(buf^1,c==1)
    a('    s_waitcnt lgkmcnt(0)')
    b=F2[buf]
    for h in range(2):
        a(f'    v_mfma_f32_32x32x16_bf16 {vr(D1[h],16)}, {vr(b+8+4*h,4)}, {vr(b+4*h,4)}, 0')
k2_stage2(1,False)
stamp(3)
for q in range(4): a(f'    ds_write_b128 v{VRED}, {vr(ACC2[1]+4*q,4)} offset:{4096*q}')
a('''
    s_waitcnt lgkmcnt(0)
    s_barrier''')
for q in range(4): a(f'    ds_read_b128 {vr(ACC2[1]+4*q,4)}, v{VRD2} offset:{4096*q}')
for q in range(4):
    a(f'    s_waitcnt lgkmcnt({3-q})')
    for i in range(4): a(f'    v_add_f32 v{ACC2[0]+4*q+i}, v{ACC2[0]+4*q+i}, v{ACC2[1]+4*q+i}')
    a(f'    v_cvt_pk_bf16_f32 v{24+2*q}, v{ACC2[0]+4*q}, v{ACC2[0]+4*q+1}')
    a(f'    v_cvt_pk_bf16_f32 v{25+2*q}, v{ACC2[0]+4*q+2}, v{ACC2[0]+4*q+3}')
    if q&1:
        r=24+2*(q-1)
        a(f'''
    v_permlane32_swap_b32 v{r}, v{r+2}
    v_permlane32_swap_b32 v{r+1}, v{r+3}
    buffer_store_dwordx4 {vr(r,4)}, v{VOUT}, s[{S_OUT}:{S_OUT+3}], s64 offen offset:{16*(q-1)}''')
stamp(4)
if OPT['stamp']:
    a('    s_waitcnt vmcnt(0)'); stamp(5); stamp_flush(6,1)
a('    s_endpgm')
a('L_k2load:')
srd(S_WO,P_WO,524288)
a(f'''
    s_sub_u32 s10, s3, 4           ; lw
    s_lshl_b32 s14, s10, 10
    v_lshlrev_b32 v1, 4, v0
    v_lshrrev_b32 v2, 3, v0
    v_and_b32 v3, 7, v0
    v_lshlrev_b32 v4, 12, v2
    v_lshl_add_u32 v4, v3, 4, v4
    s_lshl_b32 s11, s8, 18
    s_lshl_b32 s12, s10, 15
    s_add_u32 s11, s11, s12
    s_lshl_b32 s12, s7, 7
    s_add_u32 s11, s11, s12
    s_add_u32 s11, s11, {WS_BT}
    s_add_u32 m0, s14, {L_BT}
    s_add_u32 s12, s11, 131072
    buffer_load_dwordx4 v4, s[{S_WS}:{S_WS+3}], s11 offen lds
    s_add_u32 m0, s14, {L_BT+4096}
    v_bfe_u32 v5, v0, 4, 1
    buffer_load_dwordx4 v4, s[{S_WS}:{S_WS+3}], s12 offen lds
    v_lshlrev_b32 v5, 2, v5
    v_xor_b32 v5, v5, v3
    v_lshlrev_b32 v6, 10, v2
    v_lshl_add_u32 v6, v5, 4, v6
    s_lshl_b32 s11, s10, 13
    s_lshl_b32 s12, s8, 7
    s_add_u32 s11, s11, s12
    v_add_u32 v6, s11, v6
    s_lshl_b32 s12, s9, 15
    s_add_u32 s12, s12, s14''')
def k2_issue(c):
    for rh in range(2):
        a(f'''
    s_add_u32 m0, s14, {L_PQ+rh*32768+c*4096}
    s_add_u32 s15, s12, {WS_PQ+rh*8*32768+c*4096}
    buffer_load_dwordx4 v1, s[{S_WS}:{S_WS+3}], s15 offen lds''')
    for q in range(2):
        a(f'''
    s_add_u32 m0, s14, {L_WO+c*8192+q*4096}
    s_mov_b32 s15, {c*65536+q*32768}
    buffer_load_dwordx4 v6, s[{S_WO}:{S_WO+3}], s15 offen lds''')
k2_issue(0); k2_issue(1); k2_issue(2)
for c in range(8):
    a(f'    s_waitcnt vmcnt({4*min(2,7-c)})')
    if c in (0,1,3,7): stamp({0:1,1:2,3:3,7:4}[c])
    a('    s_barrier')
    if c+3<8: k2_issue(c+3)
stamp_flush(5,1)
a(f'''
L_exit_{K2}:
    s_endpgm''')

body=a.finalize([K1,K2],verbose=OPT.get('v',0))
mv,ma,ms=maxregs(body)
print('max v',mv,'a',ma,'s',ms,'lines',len(body))
ref=open('gated_mix__linear_attn_block__ssm_conv_s4__prompt.s.ref').read().split('\n')
hdr='\n'.join(l for l in ref if l.startswith(';') and '@launch' not in l and 'Override launch' not in l and 'grid=ceil' not in l)
hdr+=f'''
; @launch kernel={K1} grid=(256,1,1) block=(512,1,1) lds=163840
; @launch kernel={K2} grid=(256,1,1) block=(512,1,1) lds=163840
.amdgcn_target "amdgcn-amd-amdhsa--gfx950"
.text
.globl {K1}
.globl {K2}
.type {K1},@function
.type {K2},@function
.p2align 8
'''
def kd(n): return f'''
.p2align 6
.amdhsa_kernel {n}
  .amdhsa_next_free_vgpr 256
  .amdhsa_next_free_sgpr 102
  .amdhsa_accum_offset 256
  .amdhsa_group_segment_fixed_size 0
  .amdhsa_kernarg_size 128
  .amdhsa_user_sgpr_count 2
  .amdhsa_user_sgpr_kernarg_segment_ptr 1
  .amdhsa_system_sgpr_workgroup_id_x 1
  .amdhsa_float_denorm_mode_32 3
.end_amdhsa_kernel
'''
open(OUT,'w').write(hdr+'\n'.join(body)+'\n.section .rodata,"a"'+kd(K1)+kd(K2))
```

```python
import sys,re
src,dst=sys.argv[1],sys.argv[2]
spec=eval(sys.argv[3])
s=open(src).read()
TS=0x420000
b='''
.p2align 8
.globl d_kernel
.type d_kernel,@function
d_kernel:
    s_cmp_ge_u32 s2, 1
    s_cbranch_scc1 L_d_exit
    s_load_dwordx4 s[4:7], s[0:1], 112
    s_waitcnt lgkmcnt(0)
    s_mov_b32 s8, s4
    s_mov_b32 s9, s5
    s_mov_b32 s10, 256
    s_mov_b32 s11, 0x20000
    s_mov_b32 s12, s6
    s_mov_b32 s13, s7
    s_mov_b32 s14, 0x460000
    s_mov_b32 s15, 0x20000
    v_lshlrev_b32 v1, 9, v0
    v_bfe_u32 v2, v0, 3, 1
'''
slot=0
nk=max(x[0] for x in spec)+1
for kk in range(nk):
    base=TS+kk*0x20000
    b+=f'''    s_mov_b32 s16, {base}
    buffer_load_dword v3, v1, s[12:15], s16 offen offset:56
    buffer_load_dword v4, v1, s[12:15], s16 offen offset:60
    buffer_load_dword v5, v1, s[12:15], s16 offen offset:124
    buffer_load_dword v6, v1, s[12:15], s16 offen offset:188
    buffer_load_dword v7, v1, s[12:15], s16 offen offset:252
    s_waitcnt vmcnt(0)
    v_not_b32 v3, v3
    v_max_u32 v4, v4, v5
    v_max_u32 v6, v6, v7
    v_max_u32 v4, v4, v6
    buffer_atomic_umax v3, off, s[8:11], 0 offset:{4*slot}
    buffer_atomic_umax v4, off, s[8:11], 0 offset:{4*slot+4}
    s_waitcnt vmcnt(0)
'''
    slot+=2
for (kk,par,wave,idx) in spec:
    base=TS+kk*0x20000+wave*64
    b+=f'''    s_mov_b32 s16, {base}
    buffer_load_dword v3, v1, s[12:15], s16 offen
    buffer_load_dword v4, v1, s[12:15], s16 offen offset:{4*idx}
    s_waitcnt vmcnt(0)
    v_sub_u32 v3, v4, v3
'''
    if par is not None:
        b+=f'''    v_cmp_eq_u32 vcc, {par}, v2
    s_nop 1
    v_cndmask_b32 v3, 0, v3, vcc
'''
    b+=f'''    buffer_atomic_umax v3, off, s[8:11], 0 offset:{4*slot}
    s_waitcnt vmcnt(0)
'''
    slot+=1
assert slot<=16
b+='L_d_exit:\n    s_endpgm\n'
kd='''
.p2align 6
.amdhsa_kernel d_kernel
  .amdhsa_next_free_vgpr 16
  .amdhsa_next_free_sgpr 32
  .amdhsa_accum_offset 16
  .amdhsa_group_segment_fixed_size 0
  .amdhsa_kernarg_size 128
  .amdhsa_user_sgpr_count 2
  .amdhsa_user_sgpr_kernarg_segment_ptr 1
  .amdhsa_system_sgpr_workgroup_id_x 1
.end_amdhsa_kernel
'''
s=s.replace('\n.section .rodata,"a"',b+'\n.section .rodata,"a"')+kd
s=s.replace('.amdgcn_target','; @launch kernel=d_kernel grid=(1,1,1) block=(256,1,1) lds=0\n.amdgcn_target',1)
open(dst,'w').write(s)
```

```python
import sys
from asmgen import *

OPT = dict(stamp=0,fuse=0)
for x in sys.argv[2:]:
    k,v = x.split('='); OPT[k]=int(v)
OUT = sys.argv[1] if len(sys.argv)>1 else '../k.s'

WS_PQ=0; WS_BT=0x200000; WS_KV=0x400000; WS_G=0x410000; WS_TS=0x420000; WS_SIZE=0x460000
LOG2E=0x3fb8aa3b; INV2PI=0x3e22f983; EPS=0x358637bd
a=Asm()
def vr(b,n): return f'v[{b}:{b+n-1}]' if n>1 else f'v{b}'
def sr(b,n): return f's[{b}:{b+n-1}]' if n>1 else f's{b}'

P_X,P_W,P_WO,P_U,P_ARE,P_AIM,P_BRE,P_BIM,P_CRE,P_CIM,P_LDT,P_DSK,P_GW,P_OUT,P_DBG,P_WS=[16+2*i for i in range(16)]
def srd(d,p,size):
    a(f'''
    s_mov_b32 s{d}, s{p}
    s_mov_b32 s{d+1}, s{p+1}
    s_mov_b32 s{d+2}, {size}
    s_mov_b32 s{d+3}, 0x20000''')
S_X,S_W,S_WS,S_DBG,S_WO,S_OUT=48,52,56,60,52,60
def stamp(idx):
    if not OPT['stamp']: return
    a(f'    s_memtime s[{80+2*idx}:{81+2*idx}]')
def stamp_flush(n,kern):
    if not OPT['stamp']: return
    a(f'''
    s_memrealtime s[78:79]
    s_waitcnt lgkmcnt(0)
    s_lshl_b32 s76, s2, 3
    s_add_u32 s76, s76, s3
    s_lshl_b32 s76, s76, 6
    s_add_u32 s76, s76, {WS_TS+kern*0x20000}''')
    for i in range(n):
        a(f'''
    v_mov_b32 v250, s{80+2*i}
    buffer_store_dword v250, off, s[{S_WS}:{S_WS+3}], s76 offset:{4*i}''')
    a(f'''
    v_mov_b32 v250, s78
    buffer_store_dword v250, off, s[{S_WS}:{S_WS+3}], s76 offset:60
    v_mov_b32 v250, s74
    buffer_store_dword v250, off, s[{S_WS}:{S_WS+3}], s76 offset:56''')

def prologue(name):
    a(f'''
{name}:
    s_cmp_ge_u32 s2, 256
    s_cbranch_scc1 L_exit_{name}''')
    if OPT['stamp']: a('    s_memrealtime s[74:75]')
    stamp(0)
    a(f'''
    s_load_dwordx16 s[16:31], s[0:1], 0
    s_load_dwordx16 s[32:47], s[0:1], 64
    v_lshrrev_b32 v1, 6, v0
    v_and_b32 v0, 63, v0
    v_readfirstlane_b32 s3, v1
    s_and_b32 s4, s2, 7
    s_lshr_b32 s6, s2, 3''')

K1='gated_mix__linear_attn_block__ssm_conv_s4__prompt_kernel' if OPT['fuse'] else 'k1_kernel'
def k1end():
    a('    s_branch L_sync' if OPT['fuse'] else '    s_endpgm')
prologue(K1)
a(f'''
    s_lshr_b32 s5, s6, 1
    s_waitcnt lgkmcnt(0)''')
srd(S_X,P_X,2097152); srd(S_WS,P_WS,WS_SIZE)
a(f'''
    s_bitcmp1_b32 s6, 0
    s_cbranch_scc1 L_conv
    s_and_b32 s7, s4, 3
    s_lshl_b32 s7, s7, 2
    s_and_b32 s8, s5, 3
    s_add_u32 s7, s7, s8          ; s7 = rtile
    s_lshr_b32 s8, s4, 2
    s_lshl_b32 s8, s8, 2
    s_lshr_b32 s9, s5, 2
    s_add_u32 s8, s8, s9          ; s8 = ctile
    s_cmp_ge_u32 s3, 4
    s_cbranch_scc1 L_gload''')
srd(S_DBG,P_DBG,256)

XS=[0,16384,32768]; WSL=[49152,49152+24576,49152+2*24576]
ACC_Q=[0+8,16+8]; ACC_K=[40,56]; ACC_V=[72,88]
FR=[104,124]
VXA=[144,145,146,147]; VWA=148; VWB=149
a(f'''
    s_and_b32 s10, s3, 1           ; rh
    s_lshr_b32 s11, s3, 1          ; hp
    s_lshl_b32 s12, s8, 4
    s_cmp_lg_u32 s3, 0
    s_cbranch_scc1 L_g_noticket
    v_mov_b32 v150, 1
    s_mov_b64 exec, 1
    buffer_atomic_add v150, off, s[{S_DBG}:{S_DBG+3}], s12 sc0 sc1
    s_mov_b64 exec, -1
L_g_noticket:
    v_and_b32 v1, 31, v0           ; row32
    v_lshrrev_b32 v2, 5, v0        ; g2
    v_bfe_u32 v3, v0, 1, 3         ; f = (row>>1)&7
    v_xor_b32 v3, v3, v2           ; g2 ^ f
    s_lshl_b32 s13, s10, 13        ; rh*64*128
    v_lshl_add_u32 v4, v1, 7, s13''')
for ks in range(4):
    a(f'''
    v_xor_b32 v5, {2*ks}, v3
    v_lshl_add_u32 v{VXA[ks]}, v5, 4, v4''')
a(f'''
    v_bfe_u32 v3, v0, 2, 2         ; r
    v_lshl_add_u32 v4, v2, 3, v3   ; 8*g2 + r
    v_lshlrev_b32 v4, 7, v4
    v_and_b32 v5, 3, v0
    v_lshlrev_b32 v5, 3, v5        ; c*8
    v_bfe_u32 v6, v0, 4, 1
    v_lshl_add_u32 v5, v6, 5, v5   ; + nh*32
    v_bfe_u32 v6, v0, 3, 1         ; r>>1
    v_xor_b32 v6, s11, v6          ; hp ^ (r>>1)
    v_lshl_add_u32 v5, v6, 6, v5
    v_add_u32 v4, v4, v5
    v_add_u32 v{VWA}, {WSL[0]}, v4
    v_add_u32 v{VWB}, {WSL[2]}, v4
    v_mov_b32 v1, {EPS}''')
for r in list(range(ACC_Q[0],ACC_Q[0]+64)): a(f'    v_mov_b32 v{r}, v1')
for r in list(range(ACC_V[0],ACC_V[0]+32)): a(f'    v_mov_b32 v{r}, 0')

def g_reads(st,ks,buf):
    sl=st%3; b=FR[buf]; L=[]
    L.append(f'    ds_read_b128 {vr(b,4)}, v{VXA[ks]} offset:{XS[sl]}')
    wa,wo=(VWA,WSL[sl]-WSL[0]) if sl<2 else (VWB,0)
    def tr(part,reg):
        for half in range(2):
            L.append(f'    ds_read_b64_tr_b16 {vr(reg+2*half,2)}, v{wa} offset:{wo+part*8192+ks*2048+half*512}')
    tr(1,b+12)
    L.append(f'    ds_read_b128 {vr(b+4,4)}, v{VXA[ks]} offset:{XS[sl]+4096}')
    tr(2,b+16); tr(0,b+8)
    return L
def g_mfmas(buf):
    b=FR[buf]; M=[]
    A=[vr(b,4),vr(b+4,4)]; Bq,Bk,Bv=vr(b+8,4),vr(b+12,4),vr(b+16,4)
    for mt in range(2): M.append(f'    v_mfma_f32_32x32x16_bf16 {vr(ACC_K[mt],16)}, {A[mt]}, {Bk}, {vr(ACC_K[mt],16)}')
    for mt in range(2): M.append(f'    v_mfma_f32_32x32x16_bf16 {vr(ACC_V[mt],16)}, {A[mt]}, {Bv}, {vr(ACC_V[mt],16)}')
    for mt in range(2): M.append(f'    v_mfma_f32_32x32x16_bf16 {vr(ACC_Q[mt],16)}, {Bq}, {A[mt]}, {vr(ACC_Q[mt],16)}')
    return M
a('    s_barrier')
stamp(1)
for l in g_reads(0,0,0): a(l)
step=0
for st in range(8):
    for ks in range(4):
        buf=step&1
        M=g_mfmas(buf)
        last=(st==7 and ks==3)
        a('    s_waitcnt lgkmcnt(0)')
        if ks==3 and not last:
            a(M[0]); a('    s_barrier'); M=M[1:]
            R=g_reads(st+1,0,buf^1)
        elif last: R=[]
        else: R=g_reads(st,ks+1,buf^1)
        ri=0
        for m in M:
            a(m)
            for l in R[ri:ri+2]: a(l)
            ri+=2
        for l in R[ri:]: a(l)
        if st==1 and ks==1:
            a(f'''
    s_cmp_lg_u32 s3, 0
    s_cbranch_scc1 L_g_t1
    s_waitcnt vmcnt(0)
    v_readfirstlane_b32 s14, v150
    s_cmp_lg_u32 s14, 0
    s_cbranch_scc1 L_g_t1
    s_mul_i32 s15, s8, 4352
    s_add_u32 s15, s15, {WS_KV}
    v_lshlrev_b32 v151, 4, v0
    v_mov_b32 v152, 0
    v_mov_b32 v153, 0
    v_mov_b32 v154, 0
    v_mov_b32 v155, 0
    buffer_store_dwordx4 v[152:155], v151, s[{S_WS}:{S_WS+3}], s15 offen sc1
    buffer_store_dwordx4 v[152:155], v151, s[{S_WS}:{S_WS+3}], s15 offen offset:1024 sc1
    buffer_store_dwordx4 v[152:155], v151, s[{S_WS}:{S_WS+3}], s15 offen offset:2048 sc1
    buffer_store_dwordx4 v[152:155], v151, s[{S_WS}:{S_WS+3}], s15 offen offset:3072 sc1
    buffer_store_dwordx4 v[152:155], v151, s[{S_WS}:{S_WS+3}], s15 offen offset:3328 sc1
L_g_t1:''')
        if st==3 and ks==1:
            a(f'''
    s_cmp_lg_u32 s3, 0
    s_cbranch_scc1 L_g_t2
    s_cmp_lg_u32 s14, 0
    s_cbranch_scc1 L_g_t2
    s_waitcnt vmcnt(0)
    v_mov_b32 v150, 0x10000
    s_mov_b64 exec, 1
    buffer_atomic_add v150, off, s[{S_DBG}:{S_DBG+3}], s12 sc1
    s_mov_b64 exec, -1
L_g_t2:''')
        if st==6 and ks==1:
            a(f'    buffer_load_dword v156, off, s[{S_DBG}:{S_DBG+3}], s12 sc1')
        step+=1
stamp(2)
def phi(base,n,tmp):
    for i in range(0,n,4):
        for j in range(4): a(f'    v_mul_f32 v{tmp+j}, s70, v{base+i+j}')
        for j in range(4): a(f'    v_exp_f32_e64 v{tmp+j}, v{tmp+j} clamp')
        for j in range(4): a(f'    v_max_f32 v{base+i+j}, s71, v{base+i+j}')
        for j in range(4): a(f'    v_add_f32 v{base+i+j}, v{base+i+j}, v{tmp+j}')
def pack(dst,src,n):
    for i in range(n//2): a(f'    v_cvt_pk_bf16_f32 v{dst+i}, v{src+2*i}, v{src+2*i+1}')
a(f'''
    s_mov_b32 s70, {LOG2E}
    s_mov_b32 s71, {EPS}''')
T=104
phi(ACC_K[0],32,T)
PK=108; PV=124; D2=160
pack(PK,ACC_K[0],32); pack(PV,ACC_V[0],32)
for i in range(4):
    c='0' if i==0 else vr(D2,16)
    a(f'    v_mfma_f32_32x32x16_bf16 {vr(D2,16)}, {vr(PV+4*i,4)}, {vr(PK+4*i,4)}, {c}')
n=32
while n>1:
    n//=2
    for i in range(n): a(f'    v_add_f32 v{ACC_K[0]+i}, v{ACC_K[0]+i}, v{ACC_K[0]+n+i}')
a(f'''
    v_and_b32 v1, 3, v0
    v_bfe_u32 v2, v0, 2, 1
    v_lshl_add_u32 v1, v2, 3, v1
    v_bfe_u32 v2, v0, 3, 1
    v_lshl_add_u32 v1, v2, 2, v1       ; pos(d)
    v_and_b32 v2, 16, v0
    v_add_lshl_u32 v1, v1, v2, 2
    v_lshrrev_b32 v3, 5, v0
    v_lshl_add_u32 v3, v3, 9, v1       ; + g2*512
    v_cmp_ne_u32 vcc, 0, v2
    s_lshl_b32 s15, s8, 1
    s_add_u32 s15, s15, s11            ; pair
    s_mul_i32 s13, s15, 2176
    s_add_u32 s13, s13, {WS_KV}''')
for i in range(8): a(f'    v_cndmask_b32 v{D2+i}, v{D2+i}, v{D2+8+i}, vcc')
a(f'''
    s_mov_b32 s72, 0x40000
L_g_poll:
    s_waitcnt vmcnt(0)
    v_readfirstlane_b32 s14, v156
    s_cmp_ge_u32 s14, 0x10000
    s_cbranch_scc1 L_g_go
    buffer_load_dword v156, off, s[{S_DBG}:{S_DBG+3}], s12 sc1
    s_sub_u32 s72, s72, 1
    s_cmp_lg_u32 s72, 0
    s_cbranch_scc1 L_g_poll
L_g_go:''')
for i in range(8):
    a(f'    buffer_atomic_add_f32 v{D2+i}, v3, s[{S_WS}:{S_WS+3}], s13 offen offset:{(8*(i>>2)+(i&3))*128}')
a(f'    buffer_atomic_add_f32 v{ACC_K[0]}, v1, s[{S_WS}:{S_WS+3}], s13 offen offset:2048')
a(f'''
    s_lshl_b32 s13, s7, 1
    s_add_u32 s13, s13, s10            ; rtile*2+rh
    s_lshl_b32 s13, s13, 16
    s_lshl_b32 s15, s15, 11
    s_add_u32 s13, s13, s15
    s_add_u32 s15, s13, 32768
    v_lshlrev_b32 v2, 4, v0''')
for mt in range(2):
    phi(ACC_Q[mt],16,T)
    pack(PK+8*mt,ACC_Q[mt],16)
    so='s13' if mt==0 else 's15'
    a(f'''
    buffer_store_dwordx4 {vr(PK+8*mt,4)}, v2, s[{S_WS}:{S_WS+3}], {so} offen sc1
    buffer_store_dwordx4 {vr(PK+8*mt+4,4)}, v2, s[{S_WS}:{S_WS+3}], {so} offen offset:1024 sc1''')
stamp(3)
if OPT['stamp']:
    a('    s_waitcnt vmcnt(0)'); stamp(4); stamp_flush(5,0)
k1end()

a('L_gload:')
srd(S_W,P_W,1572864)
a(f'''
    s_sub_u32 s10, s3, 4           ; lw
    v_lshrrev_b32 v1, 3, v0
    v_lshrrev_b32 v2, 4, v0
    s_and_b32 s11, s10, 1
    s_lshl_b32 s11, s11, 2
    v_add_u32 v3, s11, v2          ; f
    v_and_b32 v4, 7, v0
    v_xor_b32 v3, v3, v4
    s_lshl_b32 s12, s7, 7
    s_lshl_b32 s13, s10, 3
    s_add_u32 s12, s12, s13
    v_add_u32 v5, s12, v1
    v_lshlrev_b32 v5, 10, v5
    v_lshl_add_u32 v10, v3, 4, v5  ; v10 = x voffset
    v_and_b32 v2, 1, v2
    v_lshlrev_b32 v2, 2, v2
    v_xor_b32 v2, v2, v4
    v_add_u32 v5, s13, v1
    v_mul_u32_u24 v5, 3072, v5
    s_lshl_b32 s12, s8, 7
    v_add_u32 v5, s12, v5
    v_lshl_add_u32 v11, v2, 4, v5  ; v11 = w voffset
    s_lshl_b32 s14, s10, 10        ; lw*1024''')
def g_issue(st):
    sl=st%3; kc=st
    for q in range(4):
        a(f'''
    s_add_u32 m0, s14, {XS[sl]+q*4096}
    s_mov_b32 s15, {kc*128+q*32768}
    buffer_load_dwordx4 v10, s[{S_X}:{S_X+3}], s15 offen lds''')
    for ih in range(2):
        for p in (1,2,0):
            a(f'''
    s_add_u32 m0, s14, {WSL[sl]+p*8192+ih*4096}
    s_mov_b32 s15, {kc*64*3072+ih*32*3072+p*1024}
    buffer_load_dwordx4 v11, s[{S_W}:{S_W+3}], s15 offen lds''')
g_issue(0); g_issue(1)
for k in range(8):
    a(f'    s_waitcnt vmcnt({10 if k<7 else 0})')
    if k<5: stamp(1+k)
    a('    s_barrier')
    if k+2<8: g_issue(k+2)
stamp(6)
stamp_flush(7,0)
k1end()

TABSZ=59*528; U0=4*TABSZ; USZ=9152; UCP=4576; KBOFF=4224
a(f'''
L_conv:
    s_lshl_b32 s7, s4, 4
    s_add_u32 s7, s7, s5
    s_cmp_ge_u32 s3, 4
    s_cbranch_scc1 L_cload
    s_lshl_b32 s8, s7, 2
    s_add_u32 s8, s8, s3
    s_lshl_b32 s9, s8, 8
    v_lshl_add_u32 v1, v0, 2, s9
    s_lshl_b32 s9, s8, 1
    v_mov_b32 v2, s9
    global_load_ushort v10, v2, s[{P_LDT}:{P_LDT+1}]
    global_load_dword v4, v1, s[{P_ARE}:{P_ARE+1}]
    global_load_dword v5, v1, s[{P_AIM}:{P_AIM+1}]
    global_load_dword v6, v1, s[{P_BRE}:{P_BRE+1}]
    global_load_dword v7, v1, s[{P_BIM}:{P_BIM+1}]
    global_load_dword v8, v1, s[{P_CRE}:{P_CRE+1}]
    global_load_dword v9, v1, s[{P_CIM}:{P_CIM+1}]
    global_load_ushort v11, v2, s[{P_DSK}:{P_DSK+1}]
    s_mul_i32 s10, s3, {TABSZ}
    s_mov_b32 s70, {LOG2E}
    s_mov_b32 s71, {INV2PI}
    s_mov_b32 s72, 0x43800000      ; 256.0''')
VTW=100; VFA=101; VGA=102; VA01=103; VA2=104; VA3=105; VZP=106; VCA=107; VCB=108; VST=109
a(f'''
    v_lshl_add_u32 v{VTW}, v0, 3, s10
    v_and_b32 v12, 31, v0                       ; m / b
    v_lshrrev_b32 v13, 5, v0                    ; g
    v_lshlrev_b32 v14, v12, 2
    v_add_u32 v14, -1, v14                      ; (2<<m)-1
    v_and_b32 v14, {(1<<11)|(1<<12)|(1<<15)|(1<<19)|(1<<23)}, v14
    v_bcnt_u32_b32 v14, v14, 0
    v_sub_u32 v14, v12, v14                     ; T(m)
    v_mul_u32_u24 v14, 528, v14
    v_lshl_add_u32 v15, v13, 4, s10             ; base + 16g
    v_add_u32 v{VFA}, v14, v15
    v_mul_u32_u24 v14, 528, v12
    v_add_u32 v14, {27*528}, v14
    v_add_u32 v{VGA}, v14, v15
    v_lshl_add_u32 v14, v12, 4, s10             ; base + 16b
    v_lshl_add_u32 v{VA01}, v13, 3, v14
    v_lshl_add_u32 v{VA2}, v13, 9, v14
    v_lshl_add_u32 v{VA3}, v13, 10, v14
    v_and_b32 v14, 15, v0
    v_sub_u32 v15, 15, v13
    v_min_u32 v14, v14, v15
    v_mul_u32_u24 v15, {KBOFF}, v13
    v_lshl_add_u32 v14, v14, 2, s10
    v_add_u32 v{VZP}, v14, v15
    v_and_b32 v14, 15, v0
    v_lshrrev_b32 v15, 4, v0                    ; h
    v_lshlrev_b32 v16, 2, v14
    v_lshl_add_u32 v16, v15, 4, v16
    v_and_b32 v17, 1, v0
    v_mul_u32_u24 v18, {KBOFF-4}, v17
    v_sub_u32 v16, v16, v18
    v_add_u32 v16, {KBOFF}, v16
    v_add_u32 v{VCA}, s10, v16
    s_mul_i32 s11, s3, {USZ}
    s_add_u32 s11, s11, {U0+448}
    v_mul_u32_u24 v18, {UCP}, v17
    v_lshl_add_u32 v18, v15, 4, v18
    v_lshrrev_b32 v16, 1, v14                   ; i'
    v_lshlrev_b32 v19, 6, v16
    v_sub_u32 v18, v18, v19
    v_add_u32 v{VCB}, s11, v18
    v_lshl_add_u32 v18, v15, 1, v17
    v_lshlrev_b32 v18, 4, v18
    v_lshl_add_u32 v{VST}, v16, 7, v18
    v_cmp_eq_u32 s[12:13], 1, v17
    v_cmp_eq_u32 s[14:15], 0, v0                ; lane 0''')
def cmul(d,x,y,conj_y=False):
    n1=' neg_lo:[1,0,0] neg_hi:[1,0,0]'
    a(f'    v_pk_mul_f32 {vr(d,2)}, {vr(x,2)}, {vr(y,2)}')
    a(f'    v_pk_mul_f32 {vr(d+2,2)}, {vr(x+2,2)}, {vr(y,2)}')
    a(f'    v_pk_fma_f32 {vr(d,2)}, {vr(x+2,2)}, {vr(y+2,2)}, {vr(d,2)}'+('' if conj_y else n1))
    a(f'    v_pk_fma_f32 {vr(d+2,2)}, {vr(x,2)}, {vr(y+2,2)}, {vr(d+2,2)}'+(n1 if conj_y else ''))
wtmp=[96,98]; wi=[0]
def trow(row,x):
    t=wtmp[wi[0]&1]; wi[0]+=1
    a(f'    v_cvt_pk_f16_f32 v{t}, v{x}, v{x+1}')
    a(f'    v_cvt_pk_f16_f32 v{t+1}, v{x+2}, v{x+3}')
    a(f'    ds_write_b64 v{VTW}, {vr(t,2)} offset:{row*528}')
AR=20; TH=22; BB=24; CC=28; CB=32; E1=36; E2=40; E4=44; E8=48; PP=52; X0=56; X1=60; X2=64; TM=68
def unpack(d,s):
    a(f'    v_lshlrev_b32 v{d}, 16, v{s}')
    a(f'    v_and_b32 v{d+1}, 0xffff0000, v{s}')
def cexp(d,scale):
    for i in range(2):
        if scale:
            a(f'    v_mul_f32 v{TM+i}, {scale}, v{AR+i}')
            a(f'    v_mul_f32 v{TM+2+i}, {scale}, v{TH+i}')
    m=[TM,TM+1] if scale else [AR,AR+1]
    t=[TM+2,TM+3] if scale else [TH,TH+1]
    for i in range(2): a(f'    v_rndne_f32 v{TM+4+i}, v{t[i]}')
    for i in range(2): a(f'    v_exp_f32 v{TM+6+i}, v{m[i]}')
    for i in range(2): a(f'    v_sub_f32 v{TM+4+i}, v{t[i]}, v{TM+4+i}')
    for i in range(2): a(f'    v_cos_f32 v{d+i}, v{TM+4+i}')
    for i in range(2): a(f'    v_sin_f32 v{d+2+i}, v{TM+4+i}')
    a(f'    v_pk_mul_f32 {vr(d,2)}, {vr(d,2)}, {vr(TM+6,2)}')
    a(f'    v_pk_mul_f32 {vr(d+2,2)}, {vr(d+2,2)}, {vr(TM+6,2)}')
a(f'''
    v_mov_b32 v96, 0x3c003c00
    v_mov_b32 v97, 0
    ds_write_b64 v{VTW}, v[96:97]
    s_waitcnt vmcnt(5)''')
wi[0]=1
stamp(1)
a(f'''
    v_lshlrev_b32 v10, 16, v10
    v_mul_f32 v10, s70, v10
    v_exp_f32 v10, v10''')
unpack(AR,4); unpack(TH,5)
a(f'''
    v_cvt_pk_bf16_f32 v10, v10, v10
    v_and_b32 v12, 0xffff0000, v10
    v_mul_f32 v{AR}, v12, v{AR}
    v_mul_f32 v{AR+1}, v12, v{AR+1}
    v_mul_f32 v{TH}, v12, v{TH}
    v_mul_f32 v{TH+1}, v12, v{TH+1}
    v_mul_f32 v{AR}, s70, v{AR}
    v_mul_f32 v{AR+1}, s70, v{AR+1}
    v_mul_f32 v{TH}, s71, v{TH}
    v_mul_f32 v{TH+1}, s71, v{TH+1}''')
cexp(E1,None); cexp(PP,'s72')
a('    s_waitcnt vmcnt(0)')
unpack(BB,6); unpack(BB+2,7); unpack(CC,8); unpack(CC+2,9)
cmul(CB,BB,CC)
a(f'''
    v_max3_f32 v13, |v{CB}|, |v{CB+1}|, |v{CB+2}|
    v_max_f32 v13, |v{CB+3}|, v13''')
trow(1,E1)
a(f'    v_max_f32_dpp v13, v13, v13 row_shr:1 row_mask:0xf bank_mask:0xf')
cmul(E2,E1,E1);
a(f'    v_max_f32_dpp v13, v13, v13 row_shr:2 row_mask:0xf bank_mask:0xf')
trow(2,E2)
a(f'    v_max_f32_dpp v13, v13, v13 row_shr:4 row_mask:0xf bank_mask:0xf')
cmul(X0,E2,E1)
a(f'    v_max_f32_dpp v13, v13, v13 row_shr:8 row_mask:0xf bank_mask:0xf')
trow(3,X0)
a(f'    v_max_f32_dpp v13, v13, v13 row_bcast:15 row_mask:0xa bank_mask:0xf')
cmul(E4,E2,E2)
a(f'    v_max_f32_dpp v13, v13, v13 row_bcast:31 row_mask:0xc bank_mask:0xf')
trow(4,E4)
a(f'    v_readlane_b32 s66, v13, 63')
cmul(X0,E4,E1); trow(5,X0)
a(f'''
    s_lshr_b32 s66, s66, 23
    s_max_u32 s66, s66, 1
    s_min_u32 s66, s66, 253
    s_lshl_b32 s67, s66, 23
    s_sub_u32 s66, 254, s66
    s_lshl_b32 s66, s66, 23        ; scale''')
cmul(X1,E4,E2); trow(6,X1)
cmul(X0,X1,E1); trow(7,X0)
cmul(E8,E4,E4)
trow(8,PP)
cmul(X0,PP,E2); trow(9,X0)
cmul(X1,X0,E2); trow(10,X1)
cmul(X0,X1,E2); trow(11,X0)
cmul(X1,X0,E2); trow(12,X1)
cmul(X2,PP,PP); trow(13,X2)
cmul(X0,X2,E4); trow(14,X0)
cmul(X1,X0,E4); trow(15,X1)
cmul(X0,X2,PP); trow(16,X0)
cmul(X1,X0,E4); trow(17,X1)
cmul(X2,X1,E4); trow(18,X2)
cur,oth=X0,X2
for i in range(4):
    cmul(oth,cur,PP); trow(19+2*i,oth)
    cmul(X1,oth,E8); trow(20+2*i,X1)
    cur,oth=oth,cur
a(f'''
    v_mul_f32 v{X0}, s66, v{CB}
    v_mul_f32 v{X0+1}, s66, v{CB+1}
    v_mul_f32 v{X0+2}, s66, -v{CB+2}
    v_mul_f32 v{X0+3}, s66, -v{CB+3}
    v_mul_f32 v12, s67, v12
    v_lshlrev_b32 v11, 16, v11
    v_cndmask_b32 v11, 0, v11, s[14:15]''')
trow(27,X0)
cur,oth=X0,X1
for b in range(1,32):
    cmul(oth,cur,E8,conj_y=True); trow(27+b,oth)
    cur,oth=oth,cur
stamp(2)
KD=20
FA=110
a('    s_waitcnt lgkmcnt(0)')
for ks in range(16):
    a(f'    ds_read_b128 {vr(FA+8*ks,4)}, v{VFA} offset:{32*ks}')
    a(f'    ds_read_b128 {vr(FA+8*ks+4,4)}, v{VGA} offset:{32*ks}')
    if ks>=3:
        k=ks-3
        a('    s_waitcnt lgkmcnt(6)')
        a(f'    v_mfma_f32_32x32x16_f16 {vr(KD,16)}, {vr(FA+8*k,4)}, {vr(FA+8*k+4,4)}, '+('0' if k==0 else vr(KD,16)))
for k in range(13,16):
    a(f'    s_waitcnt lgkmcnt({2*(15-k)})')
    a(f'    v_mfma_f32_32x32x16_f16 {vr(KD,16)}, {vr(FA+8*k,4)}, {vr(FA+8*k+4,4)}, {vr(KD,16)}')
a(f'''
    v_mov_b32 v13, 0
    ds_write_b32 v{VZP}, v13''')
stamp(3)
a(f'    v_fma_f32 v{KD}, v{KD}, v12, v11')
for i in range(1,16):
    if i in (7,11): continue
    a(f'    v_mul_f32 v{KD+i}, v12, v{KD+i}')
d=lambda i: f'v{KD+i}'
W=40
def wr2(addr,regs,offA):
    n=len(regs)
    if n==2: a(f'    ds_write_b64 v{addr}, {vr(regs[0],2)} offset:{64+offA}')
    else: a(f'    ds_write_b128 v{addr}, {vr(regs[0],4)} offset:{64+offA}')
    for i in range(n): a(f'    ds_write_b32 v{addr}, v{regs[i]} offset:{KBOFF+60+offA+4*i}')
a(f'''
    v_cvt_pk_bf16_f32 v{W}, {d(0)}, {d(1)}
    v_cvt_pk_bf16_f32 v{W+1}, {d(2)}, {d(3)}''')
wr2(VA01,[W,W+1],0)
a(f'''
    v_cvt_pk_bf16_f32 v{W+2}, {d(4)}, {d(4)}
    v_cvt_pk_bf16_f32 v{W+3}, {d(5)}, {d(6)}''')
wr2(VA01,[W+2,W+3],512)
a(f'''
    v_cvt_pk_bf16_f32 v{W+4}, {d(8)}, {d(8)}
    v_cvt_pk_bf16_f32 v{W+5}, {d(8)}, {d(9)}
    v_cvt_pk_bf16_f32 v{W+6}, {d(9)}, {d(9)}
    v_cvt_pk_bf16_f32 v{W+7}, {d(10)}, {d(10)}''')
wr2(VA2,[W+4,W+5,W+6,W+7],1024)
for w in range(2):
    A_,B_=d(12+2*w),d(13+2*w); R=W+8+4*w
    a(f'''
    v_cndmask_b32 v13, {A_}, {B_}, s[12:13]
    v_cvt_pk_bf16_f32 v{R}, {A_}, {A_}
    v_cvt_pk_bf16_f32 v{R+1}, {A_}, {A_}
    v_cvt_pk_bf16_f32 v{R+2}, v13, {B_}
    v_cvt_pk_bf16_f32 v{R+3}, {B_}, {B_}''')
    wr2(VA3,[R,R+1,R+2,R+3],2048+512*w)
ACC=60
CF=[110,158]
for r in range(ACC,ACC+32): a(f'    v_mov_b32 v{r}, 0')
a('''
    s_waitcnt lgkmcnt(0)
    s_barrier''')
stamp(4)
def c_reads(buf,sp,nsig,js):
    b=CF[buf]; L=[]
    for idx,j in enumerate(js):
        L.append(f'    ds_read_b128 {vr(b+32+4*idx,4)}, v{VCB} offset:{512*(7-j)+64*sp}')
    LA=[]
    for sg in range(nsig):
        LA.append(f'    ds_read_b64 {vr(b+4*sg,2)}, v{VCA} offset:{512*sg+64*sp}')
        LA.append(f'    ds_read_b64 {vr(b+4*sg+2,2)}, v{VCA} offset:{512*sg+64*sp+8}')
    return L[:1]+LA[:2]+L[1:]+LA[2:]
def c_mfmas(buf,nsig,js):
    b=CF[buf]; M=[]
    for sg in range(nsig):
        for idx,j in enumerate(js):
            nt=j+sg
            if nt<=7: M.append(f'    v_mfma_f32_16x16x32_bf16 {vr(ACC+4*nt,4)}, {vr(b+4*sg,4)}, {vr(b+32+4*idx,4)}, {vr(ACC+4*nt,4)}')
    return M
def c_store(p,tmp):
    L=[]
    for t in range(2):
        nt=2*p+t
        L.append(f'    v_cvt_pk_bf16_f32 v{tmp+2*t}, v{ACC+4*nt}, v{ACC+4*nt+1}')
        L.append(f'    v_cvt_pk_bf16_f32 v{tmp+2*t+1}, v{ACC+4*nt+2}, v{ACC+4*nt+3}')
    L.append(f'    buffer_store_dwordx4 {vr(tmp,4)}, v{VST}, s[{S_WS}:{S_WS+3}], s9 offen offset:{1024*p} sc1')
    return L
a(f'''
    s_lshl_b32 s9, s8, 12
    s_add_u32 s9, s9, {WS_BT}''')
seq=[(sp,8,[0,1,2,3]) for sp in range(8)]+[(sp,4,[4,5,6,7]) for sp in range(8)]
for l in c_reads(0,*seq[0]): a(l)
for it,(sp,nsig,js) in enumerate(seq):
    buf=it&1
    M=c_mfmas(buf,nsig,js)
    a('    s_waitcnt lgkmcnt(0)')
    R=[]
    if it==7:
        a(M[0]); M=M[1:]
        a('    s_barrier')
        stamp(5)
    if it+1<len(seq): R=c_reads(buf^1,*seq[it+1])
    if it==9: R=R+c_store(0,40)
    if it==10: R=R+c_store(1,44)
    per=1 if len(R)<=len(M)-4 else 2
    ri=0
    for m in M:
        a(m)
        for l in R[ri:ri+per]: a(l)
        ri+=per
    for l in R[ri:]: a(l)
for l in c_store(2,48)+c_store(3,52): a(l)
stamp(6)
if OPT['stamp']:
    a('    s_waitcnt vmcnt(0)'); stamp(7); stamp_flush(8,0)
k1end()

a(f'''
L_cload:
    s_sub_u32 s10, s3, 4           ; lw
    s_lshl_b32 s11, s10, 18
    s_lshl_b32 s12, s7, 3
    s_add_u32 s11, s11, s12
    v_lshl_add_u32 v1, v0, 12, s11
    s_sub_u32 s13, s11, 1024
    v_mov_b32 v2, s13
    s_add_u32 s13, s13, 0x100000
    v_mov_b32 v3, s13
    s_mov_b32 s14, 0x100000''')
RA=[10,20]
for rd in range(2):
    so='0' if rd==0 else 's14'
    a(f'    buffer_load_dwordx2 {vr(RA[rd],2)}, v{2+rd}, s[{S_X}:{S_X+3}], 0 offen')
    for i in range(4):
        a(f'    buffer_load_dwordx2 {vr(RA[rd]+2+2*i,2)}, v1, s[{S_X}:{S_X+3}], {so} offen offset:{1024*i}')
a(f'''
    s_lshl_b32 s15, s7, 2
    s_add_u32 s15, s15, s10
    s_lshl_b32 s66, s15, 12
    v_lshlrev_b32 v4, 4, v0
    global_load_dwordx4 v[32:35], v4, s[{P_GW}:{P_GW+1}]''')
for i in range(4):
    a(f'    buffer_load_dwordx4 {vr(36+4*i,4)}, v4, s[{S_X}:{S_X+3}], s66 offen offset:{1024*i}')
a(f'''
    v_and_b32 v5, 31, v0
    v_min_u32 v5, 27, v5
    v_lshrrev_b32 v6, 5, v0
    v_mul_u32_u24 v6, {UCP}, v6
    v_lshl_add_u32 v5, v5, 4, v6
    s_mul_i32 s67, s10, {USZ}
    s_add_u32 s67, s67, {U0+4096}
    v_add_u32 v5, s67, v5
    v_mov_b32 v52, 0
    v_mov_b32 v53, 0
    v_mov_b32 v54, 0
    v_mov_b32 v55, 0
    ds_write_b128 v5, v[52:55]
    s_lshl_b32 s67, s10, 9
    s_sub_u32 s67, {U0+4088-2048}, s67
    v_lshlrev_b32 v6, 3, v0
    v_sub_u32 v6, s67, v6
    s_mov_b32 s64, 0x05040100
    s_mov_b32 s65, 0x07060302''')
for rd in range(2):
    b=RA[rd]
    a(f'    s_waitcnt vmcnt({10 if rd==0 else 5})')
    stamp(1+2*rd)
    a(f'''
    v_mov_b32_dpp v{b}, v{b+8} wave_shr:1 row_mask:0xf bank_mask:0xf
    v_mov_b32_dpp v{b+1}, v{b+9} wave_shr:1 row_mask:0xf bank_mask:0xf''')
    row=lambda i,c: b+2+2*i+(c>>1)
    t=56
    for c in range(4):
        sel='s64' if c%2==0 else 's65'
        off=c*USZ+(2048 if rd==0 else 0)
        a(f'''
    v_perm_b32 v{t}, v{row(2,c)}, v{row(3,c)}, {sel}
    v_perm_b32 v{t+1}, v{row(0,c)}, v{row(1,c)}, {sel}
    v_perm_b32 v{t+2}, v{row(1,c)}, v{row(2,c)}, {sel}
    v_perm_b32 v{t+3}, v{row(-1,c)}, v{row(0,c)}, {sel}
    ds_write_b64 v6, {vr(t,2)} offset:{off+UCP}
    ds_write_b64 v6, {vr(t+2,2)} offset:{off}''')
        t+=4
    a('''
    s_waitcnt lgkmcnt(0)''')
    stamp(2+2*rd)
    a('    s_barrier')
a('    s_waitcnt vmcnt(0)')
for i in range(4): a(f'    v_mov_b32 v{56+i}, 0')
for k in range(4):
    for i in range(4): a(f'    v_dot2c_f32_bf16 v{56+i}, v{36+4*i+k}, v{32+k}')
a('    s_nop 2')
for m in ['row_shr:1 row_mask:0xf','row_shr:2 row_mask:0xf','row_shr:4 row_mask:0xf','row_shr:8 row_mask:0xf','row_bcast:15 row_mask:0xa','row_bcast:31 row_mask:0xc']:
    for i in range(4): a(f'    v_add_f32_dpp v{56+i}, v{56+i}, v{56+i} {m} bank_mask:0xf')
a(f'    s_mov_b32 s70, {LOG2E|0x80000000}')
for i in range(4): a(f'    v_mul_f32 v{56+i}, s70, v{56+i}')
for i in range(4): a(f'    v_exp_f32 v{56+i}, v{56+i}')
for i in range(4): a(f'    v_add_f32 v{56+i}, 1.0, v{56+i}')
for i in range(4): a(f'    v_rcp_f32 v{56+i}, v{56+i}')
a(f'''
    s_lshl_b32 s15, s15, 4
    s_add_u32 s15, s15, {WS_G}
    s_mov_b32 exec_lo, 0
    s_mov_b32 exec_hi, 0x80000000
    buffer_store_dwordx4 v[56:59], off, s[{S_WS}:{S_WS+3}], s15 sc1
    s_mov_b64 exec, -1''')
stamp(5)
stamp_flush(6,0)
k1end()
a(f'''
L_exit_{K1}:
    s_endpgm''')

K2='k2_kernel'
if OPT['fuse']:
    a('L_sync:')
    srd(S_DBG,P_DBG,256)
    a(f'''
    s_waitcnt vmcnt(0) lgkmcnt(0)
    s_barrier
    s_cmp_lg_u32 s3, 0
    s_cbranch_scc1 L_sync_done
    v_mov_b32 v1, 1
    s_mov_b64 exec, 1
    buffer_atomic_add v1, off, s[{S_DBG}:{S_DBG+3}], 0 offset:128 sc1
    s_mov_b32 s72, 0x40000
L_sync_poll:
    buffer_load_dword v1, off, s[{S_DBG}:{S_DBG+3}], 0 offset:128 sc1
    s_waitcnt vmcnt(0)
    v_readfirstlane_b32 s14, v1
    s_cmp_ge_u32 s14, 256
    s_cbranch_scc1 L_sync_go
    s_sleep 2
    s_sub_u32 s72, s72, 1
    s_cmp_lg_u32 s72, 0
    s_cbranch_scc1 L_sync_poll
L_sync_go:
    s_mov_b64 exec, -1
    buffer_inv sc1
    s_waitcnt vmcnt(0)
L_sync_done:
    s_barrier''')
    if OPT['stamp']: a('    s_memrealtime s[74:75]')
    stamp(0)
else:
    a('.p2align 8')
    prologue(K2)
L_WO=0; L_PQ=65536; L_KV=131072; KVROW=80; KVPAIR=17*80; L_BT=L_KV+16*KVPAIR
a(f'''
    s_and_b32 s7, s6, 3
    s_lshl_b32 s8, s4, 2
    s_add_u32 s7, s7, s8           ; s7 = RT (0..31)
    s_lshr_b32 s8, s6, 2           ; s8 = J
    s_lshr_b32 s9, s7, 3
    s_lshl_b32 s9, s9, 4
    s_and_b32 s10, s7, 7
    s_add_u32 s9, s9, s10
    s_waitcnt lgkmcnt(0)''')
srd(S_WS,P_WS,WS_SIZE)
a(f'''
    s_cmp_ge_u32 s3, 4
    s_cbranch_scc1 L_k2load''')
srd(S_OUT,P_OUT,2097152)
a(f'''
    s_and_b32 s10, s3, 1           ; rh
    s_lshr_b32 s11, s3, 1          ; kh
    s_lshl_b32 s12, s3, 6
    v_add_u32 v1, s12, v0          ; tid
    v_lshlrev_b32 v2, 5, v1
    s_mov_b32 s13, {WS_KV}''')
KVR=100
for r in range(4):
    a(f'''
    buffer_load_dwordx4 {vr(KVR+8*r,4)}, v2, s[{S_WS}:{S_WS+3}], s13 offen
    buffer_load_dwordx4 {vr(KVR+8*r+4,4)}, v2, s[{S_WS}:{S_WS+3}], s13 offen offset:16
    s_add_u32 s13, s13, 8192''')
a(f'''
    v_lshlrev_b32 v3, 5, v0
    buffer_load_dwordx4 {vr(KVR+32,4)}, v3, s[{S_WS}:{S_WS+3}], s13 offen
    buffer_load_dwordx4 {vr(KVR+36,4)}, v3, s[{S_WS}:{S_WS+3}], s13 offen offset:16
    v_and_b32 v4, 3, v0
    v_lshlrev_b32 v4, 1, v4
    v_bfe_u32 v5, v0, 2, 1
    v_add_u32 v4, v4, v5
    v_and_b32 v5, 24, v0
    v_add_u32 v4, v4, v5           ; v4 = row32
    s_lshl_b32 s14, s10, 3
    s_add_u32 s14, s14, s9         ; rowtile32
    s_lshl_b32 s15, s14, 7
    s_add_u32 s15, s15, {WS_G}
    v_lshlrev_b32 v5, 2, v4
    buffer_load_dword v8, v5, s[{S_WS}:{S_WS+3}], s15 offen
    v_lshrrev_b32 v6, 5, v0        ; g2''')
VPQ=10; VKV=11; VWO=12; VBT=13; VOUT=14; VRED=15; VRD2=16
a(f'''
    v_lshl_add_u32 v7, v6, 5, v4
    s_lshl_b32 s66, s10, 15
    s_lshl_b32 s67, s11, 11
    s_add_u32 s66, s66, s67
    s_add_u32 s66, s66, {L_PQ}
    v_lshl_add_u32 v{VPQ}, v7, 4, s66
    v_lshl_add_u32 v{VRED}, v0, 4, s66
    s_xor_b32 s66, s66, 2048
    v_lshl_add_u32 v{VRD2}, v0, 4, s66
    v_and_b32 v7, 31, v0
    v_min_u32 v7, 16, v7
    v_mul_u32_u24 v7, {KVROW}, v7
    v_lshl_add_u32 v7, v6, 4, v7
    s_mul_i32 s66, s11, {KVPAIR}
    s_add_u32 s66, s66, {L_KV}
    v_add_u32 v{VKV}, s66, v7
    v_bfe_u32 v7, v0, 2, 2
    v_lshl_add_u32 v9, v6, 2, v7
    v_lshlrev_b32 v9, 7, v9        ; (4*g2+r)*128
    v_and_b32 v17, 3, v0
    v_bfe_u32 v18, v0, 4, 1
    v_lshlrev_b32 v19, 3, v17
    v_lshl_add_u32 v19, v18, 5, v19
    v_bfe_u32 v20, v0, 3, 1
    v_lshl_add_u32 v19, v20, 6, v19
    s_lshl_b32 s66, s11, 12
    v_add3_u32 v{VWO}, v9, v19, s66
    v_xor_b32 v21, 64, v{VWO}
    v_lshlrev_b32 v19, 4, v17
    v_lshl_add_u32 v19, v18, 6, v19
    s_lshl_b32 s67, s10, 3
    s_add_u32 s66, s66, s67
    s_add_u32 s66, s66, {L_BT}
    v_add3_u32 v{VBT}, v9, v19, s66
    v_lshlrev_b32 v9, 10, v4
    v_lshl_add_u32 v{VOUT}, v6, 4, v9
    s_lshl_b32 s64, s14, 15
    s_lshl_b32 s66, s8, 7
    s_add_u32 s64, s64, s66
    s_lshl_b32 s66, s11, 6
    s_add_u32 s64, s64, s66
    v_lshrrev_b32 v9, 2, v1
    v_mul_u32_u24 v9, {KVROW}, v9
    v_lshl_add_u32 v9, v17, 4, v9
    v_add_u32 v9, {L_KV}, v9
    v_lshrrev_b32 v22, 2, v0
    v_mul_u32_u24 v22, {KVROW}, v22
    v_lshl_add_u32 v22, v17, 4, v22
    v_add_u32 v22, {L_KV+256*KVROW}, v22
    s_mov_b32 s71, {EPS}''')
VWO2=21
for r in range(5):
    a(f'    s_waitcnt vmcnt({9-2*r})')
    for i in range(4): a(f'    v_cvt_pk_bf16_f32 v{24+4*r+i}, v{KVR+8*r+2*i}, v{KVR+8*r+2*i+1}')
    if r<4: a(f'    ds_write_b128 v9, {vr(24+4*r,4)} offset:{64*KVROW*r}')
    else: a(f'    ds_write_b128 v22, {vr(24+4*r,4)}')
a('    s_waitcnt vmcnt(0) lgkmcnt(0)')
stamp(1)
ACC2=[48,64]
D1=[80,96]
F2=[112,144]
OF=176
own=lambda ct: None
def k2_reads(c,buf):
    b=F2[buf]; L=[]
    for h in range(2):
        L.append(f'    ds_read_b128 {vr(b+4*h,4)}, v{VPQ} offset:{4096*c+1024*h}')
        L.append(f'    ds_read_b128 {vr(b+8+4*h,4)}, v{VKV} offset:{2*KVPAIR*c+32*h}')
    for h in range(2):
        for ct in range(2):
            for hf in range(2):
                L.append(f'    ds_read_b64_tr_b16 {vr(b+16+8*h+4*ct+2*hf,2)}, v{VWO if ct==0 else VWO2} offset:{8192*c+2048*h+1024*hf}')
    return L
a(f'''
    s_lshl_b32 s66, s11, 6
    v_xor_b32 v{VWO}, s66, v{VWO}
    v_xor_b32 v{VWO2}, s66, v{VWO2}
    v_sub_f32 v23, 1.0, v8''')
def k2_stage2(buf,first):
    b=F2[buf]
    for h in range(2):
        d=D1[h]
        a(f'''
    v_add_f32 v{d+8}, s71, v{d+8}
    v_rcp_f32 v{d+8}, v{d+8}
    v_mul_f32 v{d+8}, v8, v{d+8}''')
        for i in range(8): a(f'    v_mul_f32 v{d+i}, v{d+8}, v{d+i}')
        for i in range(4): a(f'    v_cvt_pk_bf16_f32 v{OF+4*h+i}, v{d+2*i}, v{d+2*i+1}')
        for ct in range(2):
            c=vr(ACC2[ct],16)
            if first and h==0 and ct==1: c='0'
            a(f'    v_mfma_f32_32x32x16_bf16 {vr(ACC2[ct],16)}, {vr(b+16+8*h+4*ct,4)}, {vr(OF+4*h,4)}, {c}')
for c in range(8):
    buf=c&1
    a('    s_barrier')
    if c==0:
        stamp(2)
        for q in range(4): a(f'    ds_read_b64_tr_b16 {vr(24+2*q,2)}, v{VBT} offset:{1024*q}')
    for l in k2_reads(c,buf): a(l)
    if c==0:
        a('    s_waitcnt lgkmcnt(%d)'%(0 if OPT['stamp'] else 12))
        for i in range(8):
            a(f'    v_lshlrev_b32 v{ACC2[0]+2*i}, 16, v{24+i}')
            a(f'    v_and_b32 v{ACC2[0]+2*i+1}, 0xffff0000, v{24+i}')
        for i in range(16): a(f'    v_mul_f32 v{ACC2[0]+i}, v23, v{ACC2[0]+i}')
    else:
        k2_stage2(buf^1,c==1)
    a('    s_waitcnt lgkmcnt(0)')
    b=F2[buf]
    for h in range(2):
        a(f'    v_mfma_f32_32x32x16_bf16 {vr(D1[h],16)}, {vr(b+8+4*h,4)}, {vr(b+4*h,4)}, 0')
k2_stage2(1,False)
stamp(3)
for q in range(4): a(f'    ds_write_b128 v{VRED}, {vr(ACC2[1]+4*q,4)} offset:{4096*q}')
a('''
    s_waitcnt lgkmcnt(0)
    s_barrier''')
for q in range(4): a(f'    ds_read_b128 {vr(ACC2[1]+4*q,4)}, v{VRD2} offset:{4096*q}')
for q in range(4):
    a(f'    s_waitcnt lgkmcnt({3-q})')
    for i in range(4): a(f'    v_add_f32 v{ACC2[0]+4*q+i}, v{ACC2[0]+4*q+i}, v{ACC2[1]+4*q+i}')
    a(f'    v_cvt_pk_bf16_f32 v{24+2*q}, v{ACC2[0]+4*q}, v{ACC2[0]+4*q+1}')
    a(f'    v_cvt_pk_bf16_f32 v{25+2*q}, v{ACC2[0]+4*q+2}, v{ACC2[0]+4*q+3}')
    if q&1:
        r=24+2*(q-1)
        a(f'''
    v_permlane32_swap_b32 v{r}, v{r+2}
    v_permlane32_swap_b32 v{r+1}, v{r+3}
    buffer_store_dwordx4 {vr(r,4)}, v{VOUT}, s[{S_OUT}:{S_OUT+3}], s64 offen offset:{16*(q-1)}''')
stamp(4)
if OPT['stamp']:
    a('    s_waitcnt vmcnt(0)'); stamp(5); stamp_flush(6,1)
a('    s_endpgm')
a('L_k2load:')
srd(S_WO,P_WO,524288)
a(f'''
    s_sub_u32 s10, s3, 4           ; lw
    s_lshl_b32 s14, s10, 10
    v_lshlrev_b32 v1, 4, v0
    v_lshrrev_b32 v2, 3, v0
    v_and_b32 v3, 7, v0
    v_lshlrev_b32 v4, 12, v2
    v_lshl_add_u32 v4, v3, 4, v4
    s_lshl_b32 s11, s8, 18
    s_lshl_b32 s12, s10, 15
    s_add_u32 s11, s11, s12
    s_lshl_b32 s12, s7, 7
    s_add_u32 s11, s11, s12
    s_add_u32 s11, s11, {WS_BT}
    s_add_u32 m0, s14, {L_BT}
    s_add_u32 s12, s11, 131072
    buffer_load_dwordx4 v4, s[{S_WS}:{S_WS+3}], s11 offen lds
    s_add_u32 m0, s14, {L_BT+4096}
    v_bfe_u32 v5, v0, 4, 1
    buffer_load_dwordx4 v4, s[{S_WS}:{S_WS+3}], s12 offen lds
    v_lshlrev_b32 v5, 2, v5
    v_xor_b32 v5, v5, v3
    v_lshlrev_b32 v6, 10, v2
    v_lshl_add_u32 v6, v5, 4, v6
    s_lshl_b32 s11, s10, 13
    s_lshl_b32 s12, s8, 7
    s_add_u32 s11, s11, s12
    v_add_u32 v6, s11, v6
    s_lshl_b32 s12, s9, 15
    s_add_u32 s12, s12, s14''')
def k2_issue(c):
    for rh in range(2):
        a(f'''
    s_add_u32 m0, s14, {L_PQ+rh*32768+c*4096}
    s_add_u32 s15, s12, {WS_PQ+rh*8*32768+c*4096}
    buffer_load_dwordx4 v1, s[{S_WS}:{S_WS+3}], s15 offen lds''')
    for q in range(2):
        a(f'''
    s_add_u32 m0, s14, {L_WO+c*8192+q*4096}
    s_mov_b32 s15, {c*65536+q*32768}
    buffer_load_dwordx4 v6, s[{S_WO}:{S_WO+3}], s15 offen lds''')
k2_issue(0); k2_issue(1); k2_issue(2)
for c in range(8):
    a(f'    s_waitcnt vmcnt({4*min(2,7-c)})')
    if c in (0,1,3,7): stamp({0:1,1:2,3:3,7:4}[c])
    a('    s_barrier')
    if c+3<8: k2_issue(c+3)
stamp_flush(5,1)
a(f'''
L_exit_{K2}:
    s_endpgm''')

body=a.finalize([K1] if OPT['fuse'] else [K1,K2],verbose=OPT.get('v',0))
mv,ma,ms=maxregs(body)
print('max v',mv,'a',ma,'s',ms,'lines',len(body))
ref=open('gated_mix__linear_attn_block__ssm_conv_s4__prompt.s.ref').read().split('\n')
hdr='\n'.join(l for l in ref if l.startswith(';') and '@launch' not in l and 'Override launch' not in l and 'grid=ceil' not in l)
if OPT['fuse']:
  hdr+=f'''
; @launch grid=(256,1,1) block=(512,1,1) lds=163840
.amdgcn_target "amdgcn-amd-amdhsa--gfx950"
.text
.globl {K1}
.type {K1},@function
.p2align 8
'''
else:
  hdr+=f'''
; @launch kernel={K1} grid=(256,1,1) block=(512,1,1) lds=163840
; @launch kernel={K2} grid=(256,1,1) block=(512,1,1) lds=163840
.amdgcn_target "amdgcn-amd-amdhsa--gfx950"
.text
.globl {K1}
.globl {K2}
.type {K1},@function
.type {K2},@function
.p2align 8
'''
def kd(n): return f'''
.p2align 6
.amdhsa_kernel {n}
  .amdhsa_next_free_vgpr 256
  .amdhsa_next_free_sgpr 102
  .amdhsa_accum_offset 256
  .amdhsa_group_segment_fixed_size 0
  .amdhsa_kernarg_size 128
  .amdhsa_user_sgpr_count 2
  .amdhsa_user_sgpr_kernarg_segment_ptr 1
  .amdhsa_system_sgpr_workgroup_id_x 1
  .amdhsa_float_denorm_mode_32 3
.end_amdhsa_kernel
'''
open(OUT,'w').write(hdr+'\n'.join(body)+'\n.section .rodata,"a"'+kd(K1)+('' if OPT['fuse'] else kd(K2)))
```

```python
import sys,re
src,dst,mode=sys.argv[1:4]
s=open(src).read()
K='gated_mix__linear_attn_block__ssm_conv_s4__prompt_kernel'
TS=0x420000
def lanes_reduce(op,reg):
    t=f'    s_nop 1\n    v_readlane_b32 s{reg}, v8, 0\n'
    for l in range(1,64): t+=f'    v_readlane_b32 s17, v8, {l}\n    s_nop 1\n    s_{op}_u32 s{reg}, s{reg}, s17\n'
    return t
b='''
.p2align 8
.globl d_kernel
.type d_kernel,@function
d_kernel:
    s_cmp_ge_u32 s2, 1
    s_cbranch_scc1 L_d_exit
    s_load_dwordx4 s[4:7], s[0:1], 112
    s_waitcnt lgkmcnt(0)
    s_mov_b32 s12, s6
    s_mov_b32 s13, s7
    s_mov_b32 s14, 0x460000
    s_mov_b32 s15, 0x20000
'''
if mode in('span','none'):
    b+='    v_lshlrev_b32 v1, 11, v0\n'
    for off,op,reg in ((56,'min',20),(60,'max',21)):
        b+=f'    s_mov_b32 s16, {TS}\n'; n=0
        for q in range(4):
            for w in range(4):
                b+=f'    buffer_load_dword v{8+n}, v1, s[12:15], s16 offen offset:{q*512+w*64+off}\n'; n+=1
        b+='    s_waitcnt vmcnt(0)\n'
        for i in range(1,16): b+=f'    v_{op}_u32 v8, v8, v{8+i}\n'
        b+=lanes_reduce(op,reg)
    b+='    s_sub_u32 s20, s21, s20\n    s_min_u32 s20, s20, 5000\n'
    b+='    s_lshl_b32 s20, s20, 1\n' if mode=='span' else '    s_mov_b32 s20, 0\n'
else:
    par,wave,idx,op=mode.split(','); par=int(par);wave=int(wave);idx=int(idx)
    b+=f'''    v_and_b32 v2, 7, v0
    v_lshrrev_b32 v3, 3, v0
    v_lshl_add_u32 v2, v3, 4, v2
    v_lshlrev_b32 v1, 9, v2
    s_mov_b32 s16, {TS+par*8*512+wave*64}
    s_add_u32 s18, s16, {128*512}
    buffer_load_dword v8, v1, s[12:15], s16 offen offset:{4*idx}
    buffer_load_dword v9, v1, s[12:15], s16 offen
    buffer_load_dword v10, v1, s[12:15], s18 offen offset:{4*idx}
    buffer_load_dword v11, v1, s[12:15], s18 offen
    s_waitcnt vmcnt(0)
    v_sub_u32 v8, v8, v9
    v_sub_u32 v10, v10, v11
    v_{op}_u32 v8, v8, v10
'''+lanes_reduce(op,20)+lanes_reduce(op,21)+'    s_lshr_b32 s20, s20, 3\n    s_min_u32 s20, s20, 10000\n'
b+='''    s_memrealtime s[22:23]
    s_waitcnt lgkmcnt(0)
L_d_spin:
    s_memrealtime s[24:25]
    s_waitcnt lgkmcnt(0)
    s_sub_u32 s26, s24, s22
    s_cmp_lt_u32 s26, s20
    s_cbranch_scc1 L_d_spin
L_d_exit:
    s_endpgm
'''
kd='''
.p2align 6
.amdhsa_kernel d_kernel
  .amdhsa_next_free_vgpr 32
  .amdhsa_next_free_sgpr 32
  .amdhsa_accum_offset 32
  .amdhsa_group_segment_fixed_size 0
  .amdhsa_kernarg_size 128
  .amdhsa_user_sgpr_count 2
  .amdhsa_user_sgpr_kernarg_segment_ptr 1
  .amdhsa_system_sgpr_workgroup_id_x 1
.end_amdhsa_kernel
'''
s=s.replace('\n.section .rodata,"a"',b+'\n.section .rodata,"a"')+kd
s=re.sub(r'; @launch grid=(\S+) block=(\S+) lds=(\d+)',lambda m:f'; @launch kernel={K} grid={m.group(1)} block={m.group(2)} lds={m.group(3)}\n; @launch kernel=d_kernel grid=(1,1,1) block=(64,1,1) lds=0',s)
open(dst,'w').write(s)
```
